```python
import torch

def _softmax(x, axis=-1):
    return torch.softmax(x, dim=axis)

def _gelu(x):
    return torch.nn.functional.gelu(x, approximate='tanh')

def _silu(x):
    return torch.nn.functional.silu(x)

def _sigmoid(x):
    return torch.sigmoid(x)

def _layernorm(x, axis=-1, eps=1e-05):
    m = x.mean(dim=axis, keepdim=True)
    v = x.var(dim=axis, keepdim=True, unbiased=False)
    return (x - m) / torch.sqrt(v + eps)

def _scatter_add(tgt, idx, src, axis=0):
    return tgt.clone().index_add_(axis, idx, src)

def _segment_sum(src, seg, n):
    out = torch.zeros((n,) + src.shape[1:], dtype=src.dtype)
    return out.index_add_(0, seg, src)

def _pad(x, pw):
    flat = tuple((v for pair in reversed(pw) for v in pair))
    return torch.nn.functional.pad(x, flat)
kernel_name = 'adaLN_cond__sliding_block_cached__glu_gated_glu__decode'

def setup_inputs():

    _w = lambda a: (lambda t: t.to(torch.bfloat16) if t.is_floating_point() else t)(torch.as_tensor(a))

    def _A_setup():
        B, Sq, D = (4, 1, 512)
        Hq, Hkv, Sk, Dh = (32, 8, 4096, 128)
        assert Hq % Hkv == 0, (Hq, Hkv)
        return {'x': _w((lambda *s: torch.randn(*s, dtype=torch.bfloat16) * 0.05)(B, Sq, D)), 'k_cache': _w((lambda *s: torch.randn(*s, dtype=torch.bfloat16) * 3.2)(B, Hkv, Sk, Dh)), 'v_cache': _w((lambda *s: torch.randn(*s, dtype=torch.bfloat16) * 0.4)(B, Hkv, Sk, Dh)), 'wq': _w((lambda *s: torch.randn(*s, dtype=torch.bfloat16) * 3.2)(D, Hq * Dh) * D ** (-0.5)), 'wo': _w((lambda *s: torch.randn(*s, dtype=torch.bfloat16) * 0.4)(Hq * Dh, D) * (Hq * Dh) ** (-0.5))}
    _A_in = _A_setup()

    def _B_setup():
        B, S, D, F = (4, 1, 512, 1792)
        return {'x': _w((lambda *s: torch.randn(*s, dtype=torch.bfloat16) * 0.05)(B, S, D)), 'w_gate': _w((lambda *s: torch.randn(*s, dtype=torch.bfloat16) * 0.05)(D, F)), 'w_up': _w((lambda *s: torch.randn(*s, dtype=torch.bfloat16) * 0.05)(D, F)), 'w_down': _w((lambda *s: torch.randn(*s, dtype=torch.bfloat16) * 0.05)(F, D))}
    _B_in = _B_setup()
    return {'A_x': _A_in['x'], 'A_k_cache': _A_in['k_cache'], 'A_v_cache': _A_in['v_cache'], 'A_wq': _A_in['wq'], 'A_wo': _A_in['wo'], 'B_x': _B_in['x'], 'B_w_gate': _B_in['w_gate'], 'B_w_up': _B_in['w_up'], 'B_w_down': _B_in['w_down'], 'c': _w((lambda *s: torch.randn(*s, dtype=torch.bfloat16) * 0.1)(4, 512) * 8.0), 'w_mod': _w((lambda *s: torch.randn(*s, dtype=torch.bfloat16) * 0.1)(512, 6 * 512) * 512 ** (-0.5) * 8.0)}

def reference(A_x, A_k_cache, A_v_cache, A_wq, A_wo, B_x, B_w_gate, B_w_up, B_w_down, c, w_mod):

    def _A_ref(x, k_cache, v_cache, wq, wo):
        B, Sq, D = x.shape
        Hq, Dh = (32, 128)
        Hkv, Sk = (k_cache.shape[1], k_cache.shape[2])
        W = min(4096, max(256, Sk // 4))
        rep = Hq // Hkv
        q = (lambda x, *d: x.permute(*d))((x @ wq).reshape(B, Sq, Hq, Dh), 0, 2, 1, 3)
        k = (lambda x, n, axis: torch.repeat_interleave(x, n, dim=axis))(k_cache[:, :, Sk - W:, :], rep, axis=1)
        v = (lambda x, n, axis: torch.repeat_interleave(x, n, dim=axis))(v_cache[:, :, Sk - W:, :], rep, axis=1)
        scores = torch.einsum('bhqd,bhkd->bhqk', q, k) * Dh ** (-0.5)
        p = _softmax(scores, axis=-1)
        o = torch.einsum('bhqk,bhkd->bhqd', p, v)
        return (lambda x, *d: x.permute(*d))(o, 0, 2, 1, 3).reshape(B, Sq, Hq * Dh) @ wo

    def _B_ref(x, w_gate, w_up, w_down):
        g = torch.einsum('bsd,df->bsf', x, w_gate)
        u = torch.einsum('bsd,df->bsf', x, w_up)
        h = _sigmoid(g) * u
        return torch.einsum('bsf,fd->bsd', h, w_down)
    x = A_x
    mod = (_silu(c) @ w_mod).reshape(c.shape[0], 6, 1, -1)
    sa, ca, ga, sb, cb, gb = (mod[:, 0].clone(), mod[:, 1].clone(), mod[:, 2].clone(), mod[:, 3].clone(), mod[:, 4].clone(), mod[:, 5].clone())
    h = _layernorm(x, axis=-1) * (1 + ca) + sa
    x = x + ga * _A_ref(h, A_k_cache, A_v_cache, A_wq, A_wo)
    h = _layernorm(x, axis=-1) * (1 + cb) + sb
    x = x + gb * _B_ref(h, B_w_gate, B_w_up, B_w_down)
    return x
```

```python
import re

class Asm:
    def __init__(self):
        self.lines = []
    def __call__(self, s):
        for ln in s.split("\n"):
            ln = ln.strip()
            if ln:
                self.lines.append(ln)
    def label(self, name):
        self.lines.append(name + ":")
    def text(self):
        return "\n".join(self.lines)

_REG = re.compile(r"^(-|abs\()?\s*([vsa])(\d+)\)?$")
_RNG = re.compile(r"^(-)?([vsa])\[(\d+):(\d+)\]$")

def regs_of(op):
    op = op.strip()
    m = _RNG.match(op)
    if m:
        return {(m.group(2), i) for i in range(int(m.group(3)), int(m.group(4)) + 1)}
    m = _REG.match(op)
    if m:
        return {(m.group(2), int(m.group(3)))}
    if op in ("vcc", "vcc_lo", "vcc_hi"):
        return {("s", "vcc")}
    if op in ("exec", "exec_lo", "exec_hi"):
        return {("s", "exec")}
    if op == "m0":
        return {("s", "m0")}
    return set()

TRANS = ("v_exp_f32", "v_log_f32", "v_rcp_f32", "v_rsq_f32", "v_sqrt_f32", "v_sin_f32", "v_cos_f32", "v_rcp_iflag_f32")

class Ins:
    def __init__(self, line):
        self.line = line
        code = line.split(";")[0].strip()
        self.is_label = code.endswith(":")
        self.label = code[:-1] if self.is_label else None
        self.rd_v = set(); self.wr_v = set(); self.rd_s = set(); self.wr_s = set()
        self.kind = "other"; self.states = 1
        self.srcC = set(); self.srcAB = set(); self.dpp = False; self.store_data = set(); self.wide_store = False
        self.target = None; self.uncond = False; self.lds_dma = False; self.trans = False
        self.permlane = False; self.readlane = False; self.carry_in = set(); self.lanesel = set()
        if self.is_label or not code or code.startswith("."):
            self.states = 0
            self.kind = "label" if self.is_label else "dir"
            return
        parts = code.split(None, 1)
        mn = parts[0]; self.mn = mn
        rest = parts[1] if len(parts) > 1 else ""
        ops = []; depth = 0; cur = ""
        for ch in rest:
            if ch == "[": depth += 1
            if ch == "]": depth -= 1
            if ch == "," and depth == 0:
                ops.append(cur.strip()); cur = ""
            else:
                cur += ch
        if cur.strip(): ops.append(cur.strip())
        mods = ""
        if ops:
            last = ops[-1].split(None, 1)
            if len(last) > 1:
                ops[-1] = last[0]; mods = last[1]
        self.ops = ops; self.mods = mods
        V = lambda rs: {r for r in rs if r[0] in "va"}
        S = lambda rs: {r for r in rs if r[0] == "s"}
        allr = [regs_of(o) for o in ops]
        if mn == "s_nop":
            self.kind = "salu"; self.states = int(ops[0], 0) + 1; return
        if mn in ("s_branch",) or mn.startswith("s_cbranch"):
            self.kind = "branch"; self.target = ops[0]; self.uncond = mn == "s_branch"; return
        if mn == "s_endpgm":
            self.kind = "end"; self.uncond = True; return
        if mn.startswith("v_mfma"):
            self.kind = "mfma"
            self.wr_v = V(allr[0]); self.srcAB = V(allr[1]) | V(allr[2]); self.srcC = V(allr[3])
            self.rd_v = self.srcAB | self.srcC
            self.passes = 8 if "32x32" in mn else 4
            return
        if mn.startswith("v_"):
            self.kind = "valu"
            self.trans = any(mn.startswith(t) for t in TRANS)
            self.dpp = ("quad_perm" in mods or "row_" in mods or "_dpp" in mn)
            self.permlane = mn.startswith("v_permlane")
            self.readlane = mn.startswith("v_readlane") or mn.startswith("v_readfirstlane")
            ndst = 1
            if mn.startswith(("v_add_co", "v_sub_co", "v_addc_co", "v_subb_co", "v_subrev_co", "v_div_scale", "v_mad_u64_u32")):
                ndst = 2
            for r in allr[:ndst]:
                self.wr_v |= V(r); self.wr_s |= S(r)
            for r in allr[ndst:]:
                self.rd_v |= V(r); self.rd_s |= S(r)
            if mn.startswith(("v_fmac", "v_pk_fmac", "v_dot2c", "v_writelane")) or self.dpp:
                self.rd_v |= V(allr[0])
            if mn.startswith(("v_permlane16_swap", "v_permlane32_swap", "v_swap")):
                self.rd_v |= V(allr[0]); self.wr_v |= V(allr[1])
            if mn.startswith("v_cndmask") and len(ops) == 3:
                self.rd_s |= {("s", "vcc")}
            if mn.startswith("v_cmpx"):
                self.wr_s |= {("s", "exec")}
            if mn.startswith("v_readlane") and len(ops) == 3:
                self.lanesel = S(allr[2])
            return
        if mn.startswith(("buffer_", "global_", "flat_")):
            self.kind = "vmem"
            is_store = "_store" in mn; is_atomic = "_atomic" in mn
            self.lds_dma = " lds" in (" " + mods) or "_lds_" in mn
            if self.lds_dma:
                for r in allr: self.rd_v |= V(r); self.rd_s |= S(r)
                self.rd_s |= {("s", "m0")}
            elif is_store:
                for r in allr: self.rd_v |= V(r); self.rd_s |= S(r)
                data = allr[0] if mn.startswith("buffer_") else allr[1]
                self.store_data = V(data)
                self.wide_store = ("x3" in mn or "x4" in mn)
            elif is_atomic:
                for r in allr: self.rd_v |= V(r); self.rd_s |= S(r)
                if "sc0" in mods: self.wr_v |= V(allr[0])
                if "cmpswap" in mn: self.store_data = V(allr[0])
            else:
                self.wr_v |= V(allr[0])
                for r in allr[1:]: self.rd_v |= V(r); self.rd_s |= S(r)
            return
        if mn.startswith("ds_"):
            self.kind = "ds"
            if mn.startswith(("ds_read", "ds_bpermute", "ds_permute", "ds_swizzle")):
                self.wr_v |= V(allr[0])
                for r in allr[1:]: self.rd_v |= V(r)
            else:
                for r in allr: self.rd_v |= V(r)
            return
        if mn.startswith("s_"):
            self.kind = "salu"
            if mn.startswith(("s_cmp", "s_waitcnt", "s_barrier", "s_sleep", "s_setprio", "s_bitcmp")):
                for r in allr: self.rd_s |= S(r)
                return
            if allr:
                self.wr_s |= S(allr[0])
                for r in allr[1:]: self.rd_s |= S(r)
            if "saveexec" in mn: self.wr_s |= {("s", "exec")}
            return

def need(p, c):
    n = 0
    if p.kind == "valu":
        if c.kind == "mfma" and (p.wr_v & c.rd_v): n = max(n, 2)
        if c.kind == "valu":
            if p.trans and (p.wr_v & c.rd_v): n = max(n, 1)
            if c.dpp and (p.wr_v & c.rd_v): n = max(n, 2)
            if c.permlane and (p.wr_v & c.rd_v): n = max(n, 2)
            if c.readlane and (p.wr_v & c.rd_v): n = max(n, 1)
            if p.wr_s & c.rd_s: n = max(n, 4 if (p.wr_s & c.lanesel) else 2)
            if ("s", "exec") in p.wr_s:
                if c.dpp: n = max(n, 5)
                if c.readlane or c.permlane: n = max(n, 4)
        if c.kind == "vmem" and (p.wr_s & c.rd_s): n = max(n, 5)
        if c.kind == "mfma" and ("s", "exec") in p.wr_s: n = max(n, 4)
    if p.kind == "mfma":
        far = {4: 8, 8: 12}[p.passes]; part = {4: 6, 8: 10}[p.passes]; war = {4: 3, 8: 7}[p.passes]
        if c.kind == "mfma":
            if p.wr_v & c.srcAB: n = max(n, far)
            if p.wr_v & c.srcC and not (p.wr_v == c.srcC and p.passes == c.passes): n = max(n, part)
            if (p.wr_v & c.wr_v) and not (p.wr_v == c.wr_v and c.srcC == p.wr_v): n = max(n, part)
        elif c.kind in ("valu", "vmem", "ds"):
            if p.wr_v & (c.rd_v | c.wr_v): n = max(n, far)
            if c.kind == "valu" and (p.srcC & c.wr_v): n = max(n, war)
    if p.kind == "salu" and ("s", "m0") in p.wr_s and c.lds_dma: n = max(n, 1)
    if p.kind == "vmem" and p.store_data and p.wide_store:
        if c.kind == "valu" and (p.store_data & c.wr_v): n = max(n, 2)
        elif c.kind in ("vmem", "ds", "mfma") and (p.store_data & c.wr_v): n = max(n, 1)
    return n

WINDOW = 14

def fix_hazards(lines):
    for _ in range(20):
        ins = [Ins(l) for l in lines]
        labels = {x.label: i for i, x in enumerate(ins) if x.is_label}
        real = [i for i, x in enumerate(ins) if x.states > 0 or x.kind in ("branch", "end")]
        def preds(i):
            out = []
            j = i - 1
            while j >= 0:
                x = ins[j]
                if x.is_label:
                    for k, y in enumerate(ins):
                        if y.kind == "branch" and y.target == x.label: out.append(k)
                    j -= 1; continue
                if x.kind == "dir": j -= 1; continue
                if not x.uncond: out.append(j)
                break
            return out
        fix = None
        for i, c in enumerate(ins):
            if c.states == 0 and c.kind != "branch": continue
            stack = [(p, 0) for p in preds(i)]
            seen = {}
            worst = 0
            while stack:
                p, d = stack.pop()
                if d >= WINDOW: continue
                if p in seen and seen[p] <= d: continue
                seen[p] = d
                nd = need(ins[p], c)
                if nd > d: worst = max(worst, nd - d)
                for q in preds(p): stack.append((q, d + ins[p].states))
            if worst:
                fix = (i, worst); break
        if fix is None:
            return lines
        lines = _greedy(lines)
    raise RuntimeError("hazard fixing did not converge")

def _greedy(lines):
    out = list(lines)
    ins = [Ins(l) for l in out]
    br = {}
    for k, y in enumerate(ins):
        if y.kind == "branch": br.setdefault(y.target, []).append(k)
    def preds(i):
        res = []
        j = i - 1
        while j >= 0:
            x = ins[j]
            if x.is_label:
                res.extend(br.get(x.label, [])); j -= 1; continue
            if x.kind == "dir": j -= 1; continue
            if not x.uncond: res.append(j)
            break
        return res
    extra = [0] * len(ins)
    for i, c in enumerate(ins):
        if c.states == 0 and c.kind != "branch": continue
        stack = [(p, 0) for p in preds(i)]
        seen = {}; worst = 0
        while stack:
            p, d = stack.pop()
            if d >= WINDOW: continue
            if p in seen and seen[p] <= d: continue
            seen[p] = d
            nd = need(ins[p], c)
            if nd > d: worst = max(worst, nd - d)
            for q in preds(p): stack.append((q, d + ins[p].states + extra[p]))
        extra[i] = worst
    res = []
    for i, l in enumerate(out):
        n = extra[i]
        while n > 0:
            k = min(n, 16); res.append(f"s_nop {k-1}"); n -= k
        res.append(l)
    return res
```

```python
import sys
from asmlib import Asm, fix_hazards

NAME = "adaLN_cond__sliding_block_cached__glu_gated_glu__decode_kernel"

MOD, QW, OO, ST, YY, X1, OP, PROF = 0x0, 0x10000, 0x20000, 0x60000, 0x80000, 0xC0000, 0xD0000, 0x180000
WS_SIZE = 0x200000
NM = 56
L_T0, L_T1 = 0, 65536
L_IMG = 131072
A_QI, A_PI, A_MX, A_LS, A_RB = 131072, 135168, 137216, 137280, 137472
Q_HI, Q_OI = 131072, 135168
G_WG, G_WU, G_CI, G_SU = 65536, 98304, 131072, 135168
LDS_BYTES = 139264
sW, sXCD, sSLOT, sNONCE, sT = 3, 4, 5, 6, 7
SRD_WS, SRD_A, SRD_B, SRD_C, SRD_D = 8, 12, 44, 48, 52
P_X, P_K, P_V, P_WQ, P_WO, P_BX, P_WG, P_WU, P_WD, P_C, P_WM, P_OUT, P_DBG, P_WS = 16, 18, 20, 22, 24, 26, 28, 30, 32, 34, 36, 38, 40, 42
sSELA, sSEL0 = 56, 57
sBAD, sPUB, sTO = 62, 64, 66
sU = 67
sSTAMPT, sSTAMP = 80, 82
TIMEOUT = 200000

def sr(r, n=4): return f"s[{r}:{r+n-1}]"
def vr(r, n=4): return f"v[{r}:{r+n-1}]"

class Regs:
    def __init__(self, start): self.n = start; self.max = start
    def get(self, k=1, align=1):
        self.n = (self.n + align - 1) // align * align
        r = self.n; self.n += k; self.max = max(self.max, self.n); return r

class Gen:
    def __init__(self, prof=False, opts=None):
        self.a = Asm(); self.prof = prof; self.o = opts or {}
        self.uid = 0; self.maxv = 0
    def lab(self, p):
        self.uid += 1; return f"L_{p}_{self.uid}"
    def srd(self, dst, ptr, size):
        a = self.a
        a(f"s_mov_b32 s{dst}, s{ptr}\ns_mov_b32 s{dst+1}, s{ptr+1}\ns_mov_b32 s{dst+2}, {size}\ns_mov_b32 s{dst+3}, 0x20000")
    def stamp(self, i):
        if not self.prof: return
        self.a(f"s_memrealtime s[{sSTAMPT}:{sSTAMPT+1}]\ns_waitcnt lgkmcnt(0)\ns_mov_b32 s{sSTAMP+i}, s{sSTAMPT}")
    def tag(self, dst, src):
        for i in range(4):
            self.a(f"v_perm_b32 v{dst+i}, v{src+i}, v{self.vN}, s{sSEL0+i}")
    def check(self, d, t0, t1, first):
        a = self.a
        a(f"v_perm_b32 v{t0}, v{d+1}, v{d}, s{sSELA}")
        a(f"v_perm_b32 v{t1}, v{d+3}, v{d+2}, s{sSELA}")
        a(f"v_lshl_or_b32 v{t0}, v{t1}, 16, v{t0}")
        a(f"v_cmp_ne_u32 vcc, s{sNONCE}, v{t0}")
        a(f"s_mov_b64 s[{sBAD}:{sBAD+1}], vcc" if first else f"s_or_b64 s[{sBAD}:{sBAD+1}], s[{sBAD}:{sBAD+1}], vcc")
    def poll(self, loads, sets, t0, t1, pre=None):
        a = self.a
        lp = self.lab("poll"); ok = self.lab("ok")
        a(f"s_mov_b32 s{sTO}, 0")
        a.label(lp)
        for l in loads: a(l)
        a("s_waitcnt vmcnt(0)")
        for i, d in enumerate(sets): self.check(d, t0, t1, i == 0)
        a(f"s_cmp_eq_u64 s[{sBAD}:{sBAD+1}], 0\ns_cbranch_scc1 {ok}")
        a(f"s_add_u32 s{sTO}, s{sTO}, 1\ns_cmp_lt_u32 s{sTO}, {TIMEOUT}\ns_cbranch_scc1 {lp}\ns_branch L_exit")
        a.label(ok)
    def allreduce2(self, x, y, t, u, op="add"):
        a = self.a
        ins = f"v_{op}_f32"
        rs = [x] + ([y] if y is not None else [])
        ts = [t, u]
        for ctl in ("quad_perm:[1,0,3,2]", "quad_perm:[2,3,0,1]", "row_half_mirror", "row_mirror"):
            for r in rs: a(f"{ins}_dpp v{r}, v{r}, v{r} {ctl} row_mask:0xf bank_mask:0xf")
        self.rowreduce(rs, ts, op)
    def rowreduce(self, rs, ts, op):
        a = self.a
        for sw in ("v_permlane16_swap_b32", "v_permlane32_swap_b32"):
            for r, t in zip(rs, ts): a(f"v_mov_b32 v{t}, v{r}")
            for r, t in zip(rs, ts): a(f"{sw} v{t}, v{r}")
            for r, t in zip(rs, ts): a(f"v_{op}_f32 v{r}, v{r}, v{t}")
    def unpack_bf16x4(self, dst, src):
        a = self.a
        a(f"v_lshlrev_b32 v{dst}, 16, v{src}\nv_and_b32 v{dst+1}, 0xffff0000, v{src}")
        a(f"v_lshlrev_b32 v{dst+2}, 16, v{src+1}\nv_and_b32 v{dst+3}, 0xffff0000, v{src+1}")
    def img_addr(self, dst, t, base):
        a = self.a; L = self.vL
        a(f"v_lshrrev_b32 v{dst}, 3, v{L}\nv_lshlrev_b32 v{dst}, 8, v{dst}")
        a(f"v_and_b32 v{t}, 3, v{L}\nv_lshl_add_u32 v{dst}, v{t}, 4, v{dst}")
        a(f"v_bfe_u32 v{t}, v{L}, 2, 1\nv_lshl_add_u32 v{dst}, v{t}, 3, v{dst}")
        a(f"s_lshl_b32 s{sT}, s{sW}, 6\ns_add_u32 s{sT}, s{sT}, {base}\nv_add_u32 v{dst}, s{sT}, v{dst}")
    def bop_addr(self, dst, t, base):
        a = self.a; L = self.vL
        a(f"v_and_b32 v{dst}, 3, v{L}\nv_lshlrev_b32 v{dst}, 6, v{dst}")
        a(f"v_lshrrev_b32 v{t}, 4, v{L}\nv_lshl_add_u32 v{dst}, v{t}, 4, v{dst}")
        a(f"v_add_u32 v{dst}, {base}, v{dst}")
    def layernorm(self, x, n8, t, u, s1, s2):
        a = self.a
        a(f"v_add_f32 v{s1}, v{x}, v{x+1}\nv_mul_f32 v{s2}, v{x}, v{x}")
        a(f"v_fmac_f32 v{s2}, v{x+1}, v{x+1}")
        for i in range(2, 8):
            a(f"v_add_f32 v{s1}, v{s1}, v{x+i}\nv_fmac_f32 v{s2}, v{x+i}, v{x+i}")
        self.allreduce2(s1, s2, t, u)
        a(f"v_mul_f32 v{s1}, 0x3b000000, v{s1}")
        a(f"v_mul_f32 v{s2}, 0x3b000000, v{s2}")
        a(f"v_fma_f32 v{s2}, -v{s1}, v{s1}, v{s2}")
        a(f"v_max_f32 v{s2}, 0, v{s2}")
        a(f"v_add_f32 v{s2}, 0x3727c5ac, v{s2}")
        a(f"v_rsq_f32 v{s2}, v{s2}")
        for i in range(8): a(f"v_sub_f32 v{x+i}, v{x+i}, v{s1}")
        for i in range(8): a(f"v_mul_f32 v{x+i}, v{x+i}, v{s2}")
    def write_img8(self, x, t, addr):
        a = self.a
        for i in range(4): a(f"v_cvt_pk_bf16_f32 v{t+i}, v{x+2*i}, v{x+2*i+1}")
        a(f"ds_write_b64 v{addr}, {vr(t,2)}\nds_write_b64 v{addr}, {vr(t+2,2)} offset:2048")
    def gemv_chain(self, A, B, vaddr, nst, acc, zero=True):
        a = self.a
        pre = min(8, nst)
        for m in range(pre): a(f"ds_read_b128 {vr(B+4*m)}, v{vaddr} offset:{256*m}")
        issued = pre
        for m in range(nst):
            a(f"s_waitcnt lgkmcnt({issued-m-1})")
            c = "0" if (m == 0 and zero) else vr(acc)
            a(f"v_mfma_f32_16x16x32_bf16 {vr(acc)}, {vr(A+4*m)}, {vr(B+4*m)}, {c}")
            if issued < nst:
                a(f"ds_read_b128 {vr(B+4*issued)}, v{vaddr} offset:{256*issued}"); issued += 1
    def pubmask(self, on):
        self.a(f"s_mov_b64 exec, s[{sPUB}:{sPUB+1}]" if on else "s_mov_b64 exec, -1")
    def get_nonce(self):
        a = self.a
        lp = self.lab("non"); ok = self.lab("nok")
        a(f"s_mov_b32 s{sTO}, 0")
        a.label(lp)
        a(f"v_cmp_eq_u32 vcc, 0, v{self.vN}")
        a(f"v_cndmask_b32 v{self.vN}, v{self.vN}, v{self.vN+2}, vcc")
        a(f"v_readfirstlane_b32 s{sNONCE}, v{self.vN}")
        a(f"s_cmp_lg_u32 s{sNONCE}, 0\ns_cbranch_scc1 {ok}")
        a(f"buffer_load_dword v{self.vN}, v{self.vZ}, {sr(SRD_D)}, 0 offen sc1")
        a(f"s_add_u32 s{sTO}, s{sTO}, 1\ns_cmp_lt_u32 s{sTO}, {TIMEOUT}\ns_cbranch_scc0 L_exit")
        a(f"s_waitcnt vmcnt(0)\ns_branch {lp}")
        a.label(ok)
        a(f"v_mov_b32 v{self.vN}, s{sNONCE}")
    def nonce_start(self):
        a = self.a
        other = self.lab("npoll"); done = self.lab("ndone")
        self.srd(SRD_D, P_DBG, 256)
        a(f"s_cmp_lt_u32 s2, 8\ns_cselect_b32 s{sT}, 1, 0\ns_cmp_eq_u32 s{sW}, 0\ns_cselect_b32 s{sT}, s{sT}, 0")
        a(f"s_cmp_eq_u32 s{sT}, 0\ns_cbranch_scc1 {other}")
        a(f"s_mul_i32 s{sT}, s{sU}, 0x9E3779B1\ns_max_u32 s{sT}, s{sT}, 1")
        a(f"v_mov_b32 v{self.vN}, s{sT}\nv_mov_b32 v{self.vN+1}, 0\nv_mov_b32 v{self.vN+2}, s{sT}")
        a(f"s_mov_b64 exec, 1")
        a(f"buffer_atomic_cmpswap {vr(self.vN,2)}, v{self.vZ}, {sr(SRD_D)}, 0 offen sc0 sc1")
        a(f"s_mov_b64 exec, -1")
        a(f"s_branch {done}")
        a.label(other)
        a(f"v_mov_b32 v{self.vN+2}, 0")
        a(f"buffer_load_dword v{self.vN}, v{self.vZ}, {sr(SRD_D)}, 0 offen sc1")
        a.label(done)

    def prologue(self):
        a = self.a
        a("s_cmp_ge_u32 s2, 256\ns_cbranch_scc1 L_end")
        a(f"s_load_dwordx16 s[16:31], s[0:1], 0\ns_load_dwordx8 s[32:39], s[0:1], 64\ns_load_dwordx4 s[40:43], s[0:1], 96")
        a(f"s_memrealtime s[{sU}:{sU+1}]" if False else f"s_memrealtime s[68:69]")
        self.vL, self.vN, self.vZ = 1, 2, 6
        a(f"v_lshrrev_b32 v{self.vZ}, 6, v0\nv_and_b32 v{self.vL}, 63, v0")
        a(f"v_readfirstlane_b32 s{sW}, v{self.vZ}")
        a(f"s_and_b32 s{sXCD}, s2, 7\ns_lshr_b32 s{sSLOT}, s2, 3")
        a(f"v_mov_b32 v{self.vZ}, 0")
        a(f"s_mov_b32 s{sSELA}, 0x0c0c0400")
        for i in range(4): a(f"s_mov_b32 s{sSEL0+i}, {0x07060500+i}")
        a(f"s_mov_b32 s{sPUB}, 0x000f000f\ns_mov_b32 s{sPUB+1}, 0x000f000f")
        if self.prof:
            for i in range(16): a(f"s_mov_b32 s{sSTAMP+i}, 0")
        a("s_waitcnt lgkmcnt(0)")
        a(f"s_mov_b32 s{sU}, s68")
        if self.prof: a(f"s_mov_b32 s{sSTAMP}, s68")
        self.srd(SRD_WS, P_WS, WS_SIZE)
        a(f"s_cmp_lt_u32 s{sSLOT}, 16\ns_cbranch_scc1 L_roleA")
        a(f"s_cmp_lt_u32 s{sSLOT}, 24\ns_cbranch_scc1 L_roleQ")
        a("s_branch L_roleG")

    def dma128_setup(self, voff, t, u, stride):
        a = self.a; L = self.vL
        a(f"v_lshrrev_b32 v{voff}, 3, v{L}\ns_mov_b32 s{sT}, {stride}\nv_mul_lo_u32 v{voff}, v{voff}, s{sT}")
        a(f"v_bfe_u32 v{t}, v{L}, 1, 2\nv_bfe_u32 v{u}, v{L}, 4, 2\nv_xor_b32 v{t}, v{t}, v{u}")
        a(f"v_lshl_add_u32 v{voff}, v{t}, 5, v{voff}")
        a(f"v_and_b32 v{t}, 1, v{L}\nv_lshl_add_u32 v{voff}, v{t}, 4, v{voff}")
    def dma128(self, srd, voff, sbase, stride, ldsbase):
        a = self.a
        so = sU + 1
        a(f"s_mul_i32 s{so}, s{sW}, {32*stride}\ns_add_u32 s{so}, s{so}, s{sbase}")
        a(f"s_lshl_b32 s{sT}, s{sW}, 12\ns_add_u32 s{sT}, s{sT}, {ldsbase}\ns_mov_b32 m0, s{sT}")
        for p in range(4):
            for i in range(4):
                a(f"buffer_load_dwordx4 v{voff}, {sr(srd)}, s{so} offen nt lds")
                if p == 3 and i == 3: break
                if i < 3: a(f"s_add_u32 m0, m0, 1024\ns_add_u32 s{so}, s{so}, {8*stride}")
                else: a(f"s_add_u32 m0, m0, {16384-3*1024}\ns_add_u32 s{so}, s{so}, {(128-24)*stride}")
    def tr128_addr(self, dst, t, u, base):
        a = self.a; L = self.vL
        a(f"v_lshrrev_b32 v{dst}, 2, v{L}\nv_lshlrev_b32 v{dst}, 7, v{dst}")
        a(f"v_bfe_u32 v{t}, v{L}, 3, 2\nv_xor_b32 v{t}, s{sW}, v{t}")
        a(f"v_lshl_add_u32 v{dst}, v{t}, 5, v{dst}")
        a(f"v_and_b32 v{t}, 3, v{L}\nv_lshl_add_u32 v{dst}, v{t}, 3, v{dst}")
        if base: a(f"v_add_u32 v{dst}, {base}, v{dst}")
    def tr_pair(self, dst, vaddr, off0, off1):
        self.a(f"ds_read_b64_tr_b16 {vr(dst,2)}, v{vaddr} offset:{off0}\nds_read_b64_tr_b16 {vr(dst+2,2)}, v{vaddr} offset:{off1}")

    def pub_voff(self, dst, t, bstride):
        a = self.a; L = self.vL
        a(f"v_and_b32 v{dst}, 15, v{L}\nv_mul_u32_u24 v{dst}, {bstride}, v{dst}")
        a(f"v_lshrrev_b32 v{t}, 4, v{L}\nv_lshl_add_u32 v{dst}, v{t}, 4, v{dst}")

    def roleG(self):
        a = self.a; L = self.vL; R = Regs(8)
        a.label("L_roleG")
        vT0, vT1 = R.get(), R.get()
        vImg, vBop, vVo, vTr = R.get(), R.get(), R.get(), R.get()
        vX = R.get(8, 2); vRaw = R.get(4, 2); vP = R.get(4, 4); vAcc = R.get(4, 4); vPub = R.get()
        vB = R.get(64, 4); vA = R.get(64, 4); vWD = R.get(32, 4)
        vCB = R.get(8, 4); vSB = R.get(8, 4); vG = R.get(8, 4); vAc2 = vA
        vS1, vS2 = R.get(), R.get()
        self.maxv = max(self.maxv, R.max)
        self.nonce_start()
        self.img_addr(vImg, vT0, G_CI)
        self.bop_addr(vBop, vT0, G_CI)
        a(f"s_cmp_ge_u32 s{sSLOT}, 30\ns_cbranch_scc1 L_G_mlp0")
        self.srd(SRD_A, P_WM, 512*6144); self.srd(SRD_B, P_C, 4096)
        a(f"s_lshl_b32 s{sT}, s{sW}, 10\nv_lshl_add_u32 v{vT0}, v{L}, 3, s{sT}")
        a(f"buffer_load_dwordx2 {vr(vRaw,2)}, v{vT0}, {sr(SRD_B)}, 0 offen")
        a(f"buffer_load_dwordx2 {vr(vRaw+2,2)}, v{vT0}, {sr(SRD_B)}, 0 offen offset:512")
        self.dma128_setup(vVo, vT0, vT1, 6144)
        sb = sU + 2
        a(f"s_sub_u32 s{sb}, s{sSLOT}, 24\ns_lshl_b32 s{sb}, s{sb}, 10\ns_lshl_b32 s{sT}, s{sXCD}, 7\ns_add_u32 s{sb}, s{sb}, s{sT}")
        self.dma128(SRD_A, vVo, sb, 6144, L_T0)
        self.stamp(1)
        self.tr128_addr(vTr, vT0, vT1, L_T0)
        a("s_waitcnt vmcnt(16)")
        self.unpack_bf16x4(vX, vRaw); self.unpack_bf16x4(vX+4, vRaw+2)
        for i in range(8): a(f"v_mul_f32 v{vG+i}, 0xbfb8aa3b, v{vX+i}")
        for i in range(8): a(f"v_exp_f32 v{vG+i}, v{vG+i}")
        for i in range(8): a(f"v_add_f32 v{vG+i}, 1.0, v{vG+i}")
        for i in range(8): a(f"v_rcp_f32 v{vG+i}, v{vG+i}")
        for i in range(8): a(f"v_mul_f32 v{vX+i}, v{vX+i}, v{vG+i}")
        self.write_img8(vX, vP, vImg)
        a("s_waitcnt lgkmcnt(0)\ns_barrier")
        for m in range(16):
            a(f"ds_read_b128 {vr(vB+4*m)}, v{vBop} offset:{256*m}")
            if m == 11: a("s_waitcnt lgkmcnt(4)")
        a("s_waitcnt lgkmcnt(0)")
        for p in range(4):
            a(f"s_waitcnt vmcnt({4*(3-p)})\ns_barrier")
            for k in range(4):
                m = 4*p + k
                self.tr_pair(vA+4*m, vTr, 4096*m, 4096*m + 2048)
            for k in range(4):
                m = 4*p + k
                a(f"s_waitcnt lgkmcnt({2*(3-k)})")
                a(f"v_mfma_f32_16x16x32_bf16 {vr(vAcc)}, {vr(vA+4*m)}, {vr(vB+4*m)}, {'0' if m == 0 else vr(vAcc)}")
        self.stamp(2)
        self.get_nonce()
        self.pub_voff(vPub, vT0, 2048)
        a(f"s_sub_u32 s{sb}, s{sSLOT}, 24\ns_lshl_b32 s{sb}, s{sb}, 13\ns_lshl_b32 s{sT}, s{sXCD}, 8\ns_add_u32 s{sb}, s{sb}, s{sT}")
        a(f"s_lshl_b32 s{sT}, s{sW}, 6\ns_add_u32 s{sb}, s{sb}, s{sT}")
        self.tag(vP, vAcc)
        self.pubmask(True)
        a(f"buffer_store_dwordx4 {vr(vP)}, v{vPub}, {sr(SRD_WS)}, s{sb} offen sc1")
        self.pubmask(False)
        self.stamp(3)
        a(f"s_cmp_eq_u32 s{sSLOT}, 24\ns_cbranch_scc1 L_exit")
        a("s_barrier")
        a("s_branch L_G_mlp")
        a.label("L_G_mlp0")
        a("s_waitcnt vmcnt(0)")
        self.get_nonce()
        a.label("L_G_mlp")
        sM = sU + 3
        a(f"s_mul_i32 s{sM}, s{sXCD}, 7\ns_add_u32 s{sM}, s{sM}, s{sSLOT}\ns_sub_u32 s{sM}, s{sM}, 25")
        self.srd(SRD_A, P_WG, 512*3584); self.srd(SRD_B, P_WU, 512*3584); self.srd(SRD_C, P_WD, 1792*1024)
        a(f"v_lshrrev_b32 v{vVo}, 2, v{L}\nv_mul_u32_u24 v{vVo}, 3584, v{vVo}")
        a(f"v_bfe_u32 v{vT0}, v{L}, 1, 1\nv_bfe_u32 v{vT1}, v{L}, 4, 1\nv_xor_b32 v{vT0}, v{vT0}, v{vT1}")
        a(f"v_lshl_add_u32 v{vVo}, v{vT0}, 5, v{vVo}\nv_and_b32 v{vT0}, 1, v{L}\nv_lshl_add_u32 v{vVo}, v{vT0}, 4, v{vVo}")
        so = sU + 1
        for srd, lb in ((SRD_A, G_WG), (SRD_B, G_WU)):
            a(f"s_mul_i32 s{so}, s{sW}, {8*16*3584}\ns_lshl_b32 s{sT}, s{sM}, 6\ns_add_u32 s{so}, s{so}, s{sT}")
            a(f"s_lshl_b32 s{sT}, s{sW}, 13\ns_add_u32 s{sT}, s{sT}, {lb}\ns_mov_b32 m0, s{sT}")
            for i in range(8):
                if i: a(f"s_add_u32 m0, m0, 1024\ns_add_u32 s{so}, s{so}, {16*3584}")
                else: a("s_nop 0")
                a(f"buffer_load_dwordx4 v{vVo}, {sr(srd)}, s{so} offen nt lds")
        a(f"s_lshl_b32 s{so}, s{sM}, 15\ns_lshl_b32 s{sT}, s{sW}, 13\ns_add_u32 s{so}, s{so}, s{sT}\ns_add_u32 s{sT}, s{sT}, {L_T0}\ns_mov_b32 m0, s{sT}")
        a(f"v_lshlrev_b32 v{vT1}, 4, v{L}")
        for i in range(8):
            a(f"v_xor_b32 v{vT0}, {32*i}, v{vT1}")
            if i: a(f"s_add_u32 m0, m0, 1024\ns_add_u32 s{so}, s{so}, 1024")
            a(f"buffer_load_dwordx4 v{vT0}, {sr(SRD_C)}, s{so} offen nt lds")
        self.stamp(4)
        vRow = vPub
        a(f"s_lshl_b32 s{sT}, s{sW}, 11\nv_lshl_add_u32 v{vRow}, v{L}, 4, s{sT}")
        sa, sb2 = sU + 4, sU + 5
        a(f"s_mov_b32 s{sa}, {MOD+4*8192}\ns_mov_b32 s{sb2}, {MOD+3*8192}")
        self.poll([f"buffer_load_dwordx4 {vr(vCB)}, v{vRow}, {sr(SRD_WS)}, s{sa} offen sc1",
                   f"buffer_load_dwordx4 {vr(vCB+4)}, v{vRow}, {sr(SRD_WS)}, s{sa} offen offset:1024 sc1",
                   f"buffer_load_dwordx4 {vr(vSB)}, v{vRow}, {sr(SRD_WS)}, s{sb2} offen sc1",
                   f"buffer_load_dwordx4 {vr(vSB+4)}, v{vRow}, {sr(SRD_WS)}, s{sb2} offen offset:1024 sc1"],
                  [vCB, vCB+4, vSB, vSB+4], vT0, vT1)
        for i in range(8): a(f"v_add_f32 v{vCB+i}, 1.0, v{vCB+i}")
        a("s_barrier")
        a(f"v_lshrrev_b32 v{vTr}, 2, v{L}\nv_lshlrev_b32 v{vTr}, 6, v{vTr}")
        a(f"s_and_b32 s{sT}, s{sW}, 1\nv_bfe_u32 v{vT0}, v{L}, 4, 1\nv_xor_b32 v{vT0}, s{sT}, v{vT0}\nv_lshl_add_u32 v{vTr}, v{vT0}, 5, v{vTr}")
        a(f"v_and_b32 v{vT0}, 3, v{L}\nv_lshl_add_u32 v{vTr}, v{vT0}, 3, v{vTr}")
        a(f"s_lshr_b32 s{sT}, s{sW}, 1\ns_lshl_b32 s{sT}, s{sT}, 15\ns_add_u32 s{sT}, s{sT}, {G_WG}\nv_add_u32 v{vTr}, s{sT}, v{vTr}")
        for m in range(16):
            self.tr_pair(vA+4*m, vTr, 2048*m, 2048*m + 1024)
            if m % 4 == 3: a("s_waitcnt lgkmcnt(0)")
        a(f"v_lshrrev_b32 v{vTr}, 2, v{L}\nv_and_b32 v{vT0}, 7, v{vTr}\nv_lshlrev_b32 v{vTr}, 10, v{vTr}")
        a(f"v_lshl_add_u32 v{vTr}, v{vT0}, 5, v{vTr}\nv_and_b32 v{vT0}, 3, v{L}\nv_lshl_add_u32 v{vTr}, v{vT0}, 3, v{vTr}")
        a(f"s_lshl_b32 s{sT}, s{sW}, 8\ns_add_u32 s{sT}, s{sT}, {L_T0}\nv_add_u32 v{vTr}, s{sT}, v{vTr}")
        for tl in range(8):
            a(f"v_xor_b32 v{vT0}, {32*tl}, v{vTr}")
            self.tr_pair(vWD+4*tl, vT0, 0, 16384)
            if tl % 4 == 3: a("s_waitcnt lgkmcnt(0)")
        self.stamp(5)
        a(f"s_mov_b32 s{sa}, {X1}")
        self.poll([f"buffer_load_dwordx4 {vr(vX)}, v{vRow}, {sr(SRD_WS)}, s{sa} offen sc1",
                   f"buffer_load_dwordx4 {vr(vX+4)}, v{vRow}, {sr(SRD_WS)}, s{sa} offen offset:1024 sc1"],
                  [vX, vX+4], vT0, vT1)
        self.stamp(6)
        self.layernorm(vX, None, vT0, vT1, vS1, vS2)
        for i in range(8): a(f"v_fma_f32 v{vX+i}, v{vX+i}, v{vCB+i}, v{vSB+i}")
        self.write_img8(vX, vP, vImg)
        a("s_waitcnt lgkmcnt(0)\ns_barrier")
        self.gemv_chain(vA, vB, vBop, 16, vAcc)
        skip = self.lab("up")
        a(f"s_cmp_ge_u32 s{sW}, 2\ns_cbranch_scc1 {skip}")
        for i in range(4): a(f"v_mul_f32 v{vAcc+i}, 0xbfb8aa3b, v{vAcc+i}")
        for i in range(4): a(f"v_exp_f32 v{vAcc+i}, v{vAcc+i}")
        for i in range(4): a(f"v_add_f32 v{vAcc+i}, 1.0, v{vAcc+i}")
        for i in range(4): a(f"v_rcp_f32 v{vAcc+i}, v{vAcc+i}")
        a.label(skip)
        a(f"v_and_b32 v{vT0}, 3, v{L}\nv_lshlrev_b32 v{vT0}, 7, v{vT0}\nv_lshrrev_b32 v{vT1}, 4, v{L}\nv_lshl_add_u32 v{vT0}, v{vT1}, 4, v{vT0}")
        a(f"v_add_u32 v{vS1}, {G_SU}, v{vT0}")
        a(f"s_lshr_b32 s{sT}, s{sW}, 1\ns_lshl_b32 s{sT}, s{sT}, 9\ns_and_b32 s{so}, s{sW}, 1\ns_lshl_b32 s{so}, s{so}, 6\ns_add_u32 s{sT}, s{sT}, s{so}")
        a(f"v_add_u32 v{vT0}, s{sT}, v{vS1}")
        self.pubmask(True)
        a(f"ds_write_b128 v{vT0}, {vr(vAcc)}")
        self.pubmask(False)
        a("s_waitcnt lgkmcnt(0)\ns_barrier")
        a(f"ds_read_b128 {vr(vX)}, v{vS1}\nds_read_b128 {vr(vX+4)}, v{vS1} offset:64")
        a(f"ds_read_b128 {vr(vG)}, v{vS1} offset:512\nds_read_b128 {vr(vG+4)}, v{vS1} offset:576")
        a("s_waitcnt lgkmcnt(0)")
        for i in range(8): a(f"v_mul_f32 v{vX+i}, v{vX+i}, v{vG+i}")
        for i in range(4): a(f"v_cvt_pk_bf16_f32 v{vP+i}, v{vX+2*i}, v{vX+2*i+1}")
        for tl in range(8):
            a(f"v_mfma_f32_16x16x32_bf16 {vr(vAc2+4*tl)}, {vr(vWD+4*tl)}, {vr(vP)}, 0")
        self.pub_voff(vPub, vT0, 64)
        a(f"s_mul_i32 s{so}, s{sW}, {8*NM*256}\ns_lshl_b32 s{sT}, s{sM}, 8\ns_add_u32 s{so}, s{so}, s{sT}\ns_add_u32 s{so}, s{so}, {OP}")
        for tl in range(8): self.tag(vB+4*tl, vAc2+4*tl)
        self.pubmask(True)
        for tl in range(8):
            a(f"buffer_store_dwordx4 {vr(vB+4*tl)}, v{vPub}, {sr(SRD_WS)}, s{so} offen sc1")
            if tl < 7: a(f"s_add_u32 s{so}, s{so}, {NM*256}")
        self.pubmask(False)
        self.stamp(7)
        a("s_branch L_exit")

    def roleQ(self):
        a = self.a; L = self.vL; R = Regs(8)
        a.label("L_roleQ")
        vT0, vT1 = R.get(), R.get()
        vImg, vBop, vVo, vTr, vRow, vPub = [R.get() for _ in range(6)]
        vS1, vS2 = R.get(), R.get()
        vX = R.get(8, 4); vRaw = R.get(4, 4); vP = R.get(4, 4); vAcc = R.get(16, 4)
        vSA = R.get(8, 4); vCA = R.get(8, 4); vSt = R.get(4, 4); vVo4 = R.get(4)
        vB = R.get(64, 4); vA = R.get(64, 4)
        self.maxv = max(self.maxv, R.max)
        self.nonce_start()
        self.srd(SRD_A, P_WQ, 512*8192); self.srd(SRD_B, P_X, 4096); self.srd(SRD_C, P_WO, 4096*1024)
        a(f"s_lshl_b32 s{sT}, s{sW}, 10\nv_lshl_add_u32 v{vT0}, v{L}, 3, s{sT}")
        a(f"buffer_load_dwordx2 {vr(vRaw,2)}, v{vT0}, {sr(SRD_B)}, 0 offen")
        a(f"buffer_load_dwordx2 {vr(vRaw+2,2)}, v{vT0}, {sr(SRD_B)}, 0 offen offset:512")
        self.dma128_setup(vVo, vT0, vT1, 8192)
        sJ, sb = sU + 3, sU + 2
        a(f"s_sub_u32 s{sJ}, s{sSLOT}, 16")
        a(f"s_lshl_b32 s{sb}, s{sXCD}, 10\ns_lshl_b32 s{sT}, s{sJ}, 7\ns_add_u32 s{sb}, s{sb}, s{sT}")
        self.dma128(SRD_A, vVo, sb, 8192, L_T0)
        self.stamp(1)
        self.img_addr(vImg, vT0, Q_HI)
        self.bop_addr(vBop, vT0, Q_HI)
        self.tr128_addr(vTr, vT0, vT1, L_T0)
        a(f"s_lshl_b32 s{sT}, s{sW}, 11\nv_lshl_add_u32 v{vRow}, v{L}, 4, s{sT}")
        a("s_waitcnt vmcnt(16)")
        self.unpack_bf16x4(vX, vRaw); self.unpack_bf16x4(vX+4, vRaw+2)
        self.layernorm(vX, None, vT0, vT1, vS1, vS2)
        a("s_waitcnt vmcnt(0)\ns_barrier")
        self.stamp(2)
        for m in range(16):
            self.tr_pair(vA+4*m, vTr, 4096*m, 4096*m + 2048)
            if m % 4 == 3: a("s_waitcnt lgkmcnt(0)")
        self.get_nonce()
        s0, s1 = sU + 4, sU + 5
        a(f"s_mov_b32 s{s0}, {MOD}\ns_mov_b32 s{s1}, {MOD+8192}")
        self.poll([f"buffer_load_dwordx4 {vr(vSA)}, v{vRow}, {sr(SRD_WS)}, s{s0} offen sc1",
                   f"buffer_load_dwordx4 {vr(vSA+4)}, v{vRow}, {sr(SRD_WS)}, s{s0} offen offset:1024 sc1",
                   f"buffer_load_dwordx4 {vr(vCA)}, v{vRow}, {sr(SRD_WS)}, s{s1} offen sc1",
                   f"buffer_load_dwordx4 {vr(vCA+4)}, v{vRow}, {sr(SRD_WS)}, s{s1} offen offset:1024 sc1"],
                  [vSA, vSA+4, vCA, vCA+4], vT0, vT1)
        self.stamp(3)
        for i in range(8): a(f"v_add_f32 v{vSA+i}, v{vSA+i}, v{vX+i}")
        for i in range(8): a(f"v_fmac_f32 v{vSA+i}, v{vX+i}, v{vCA+i}")
        self.write_img8(vSA, vP, vImg)
        a("s_waitcnt lgkmcnt(0)\ns_barrier")
        self.gemv_chain(vA, vB, vBop, 16, vAcc)
        self.pub_voff(vPub, vT0, 8*2048)
        so = sU + 1
        a(f"s_lshl_b32 s{so}, s{sXCD}, 11\ns_lshl_b32 s{sT}, s{sJ}, 8\ns_add_u32 s{so}, s{so}, s{sT}\ns_lshl_b32 s{sT}, s{sW}, 6\ns_add_u32 s{so}, s{so}, s{sT}\ns_add_u32 s{so}, s{so}, {QW}")
        self.tag(vP, vAcc)
        self.pubmask(True)
        a(f"buffer_store_dwordx4 {vr(vP)}, v{vPub}, {sr(SRD_WS)}, s{so} offen sc1")
        self.pubmask(False)
        self.stamp(4)
        a(f"v_lshrrev_b32 v{vT0}, 5, v{L}\nv_bfe_u32 v{vT1}, v{L}, 1, 4\nv_xor_b32 v{vT1}, v{vT1}, v{vT0}")
        a(f"v_lshlrev_b32 v{vT1}, 5, v{vT1}\nv_lshl_add_u32 v{vT1}, v{vT0}, 10, v{vT1}")
        a(f"v_and_b32 v{vT0}, 1, v{L}\nv_lshl_add_u32 v{vVo4}, v{vT0}, 4, v{vT1}")
        for i in range(1, 4): a(f"v_xor_b32 v{vVo4+i}, {64*i}, v{vVo4}")
        sH = sU + 6
        a(f"s_lshr_b32 s{sH}, s{sJ}, 1\ns_lshl_b32 s{sT}, s{sXCD}, 2\ns_add_u32 s{sH}, s{sH}, s{sT}")
        a(f"s_lshl_b32 s{so}, s{sH}, 17\ns_and_b32 s{sT}, s{sJ}, 1\ns_lshl_b32 s{sT}, s{sT}, 9\ns_add_u32 s{so}, s{so}, s{sT}")
        a(f"s_lshl_b32 s{sT}, s{sW}, 13\ns_add_u32 s{so}, s{so}, s{sT}")
        a(f"s_lshl_b32 s{sT}, s{sW}, 12\ns_add_u32 s{sT}, s{sT}, {L_T1}\ns_mov_b32 m0, s{sT}")
        for p in range(4):
            for i in range(4):
                if i or p:
                    if i: a(f"s_add_u32 m0, m0, 1024\ns_add_u32 s{so}, s{so}, 2048")
                    else: a(f"s_add_u32 m0, m0, {16384-3072}\ns_add_u32 s{so}, s{so}, {32768-3*2048}")
                else: a("s_nop 0")
                a(f"buffer_load_dwordx4 v{vVo4+i}, {sr(SRD_C)}, s{so} offen nt lds")
        a(f"v_lshrrev_b32 v{vTr}, 2, v{L}\nv_and_b32 v{vT0}, 7, v{vTr}\nv_lshlrev_b32 v{vTr}, 9, v{vTr}")
        a(f"s_lshl_b32 s{sT}, s{sW}, 2\nv_xor_b32 v{vT0}, s{sT}, v{vT0}\nv_lshl_add_u32 v{vTr}, v{vT0}, 5, v{vTr}")
        a(f"v_and_b32 v{vT0}, 3, v{L}\nv_lshl_add_u32 v{vTr}, v{vT0}, 3, v{vTr}\nv_add_u32 v{vTr}, {L_T1}, v{vTr}")
        a(f"v_and_b32 v{vT0}, 3, v{L}\nv_lshlrev_b32 v{vRow}, 11, v{vT0}\nv_lshrrev_b32 v{vT1}, 2, v{L}\nv_lshl_add_u32 v{vRow}, v{vT1}, 4, v{vRow}")
        sO, sS = sU + 7, sU + 8
        a(f"s_lshl_b32 s{sO}, s{sW}, 3\ns_add_u32 s{sO}, s{sO}, s{sXCD}\ns_lshl_b32 s{sS}, s{sO}, 8\ns_lshl_b32 s{sO}, s{sO}, 13")
        a(f"s_lshr_b32 s{sT}, s{sJ}, 1\ns_lshl_b32 s{so}, s{sT}, 9\ns_add_u32 s{sO}, s{sO}, s{so}\ns_add_u32 s{sO}, s{sO}, {OO}")
        a(f"s_lshl_b32 s{sT}, s{sT}, 6\ns_add_u32 s{sS}, s{sS}, s{sT}\ns_add_u32 s{sS}, s{sS}, {ST}")
        a(f"v_lshlrev_b32 v{vS1}, 4, v{vT0}")
        a(f"v_lshrrev_b32 v{vT0}, 5, v{L}\nv_lshlrev_b32 v{vImg}, 8, v{vT0}\nv_bfe_u32 v{vT0}, v{L}, 2, 2\nv_lshl_add_u32 v{vImg}, v{vT0}, 4, v{vImg}")
        a(f"v_bfe_u32 v{vT0}, v{L}, 4, 1\nv_lshl_add_u32 v{vImg}, v{vT0}, 3, v{vImg}")
        a(f"s_lshl_b32 s{sT}, s{sW}, 6\ns_add_u32 s{sT}, s{sT}, {Q_OI}\nv_add_u32 v{vImg}, s{sT}, v{vImg}")
        self.bop_addr(vBop, vT0, Q_OI)
        a("s_waitcnt vmcnt(0)\ns_barrier")
        self.stamp(5)
        for tl in range(4):
            a(f"v_xor_b32 v{vT0}, {32*tl}, v{vTr}")
            for m in range(4):
                self.tr_pair(vA+16*tl+4*m, vT0, 16384*m, 16384*m + 8192)
            a("s_waitcnt lgkmcnt(0)")
        self.poll([f"buffer_load_dwordx4 {vr(vSA)}, v{vRow}, {sr(SRD_WS)}, s{sO} offen sc1",
                   f"buffer_load_dwordx4 {vr(vSA+4)}, v{vRow}, {sr(SRD_WS)}, s{sO} offen offset:256 sc1",
                   f"buffer_load_dwordx4 {vr(vSt)}, v{vS1}, {sr(SRD_WS)}, s{sS} offen sc1"],
                  [vSA, vSA+4, vSt], vT0, vT1)
        self.stamp(6)
        q1 = "quad_perm:[1,0,3,2] row_mask:0xf bank_mask:0xf"; q2 = "quad_perm:[2,3,0,1] row_mask:0xf bank_mask:0xf"
        a(f"v_max_f32_dpp v{vT0}, v{vSt}, v{vSt} {q1}")
        a(f"v_max_f32_dpp v{vT0}, v{vT0}, v{vT0} {q2}")
        a(f"v_sub_f32 v{vT0}, v{vSt}, v{vT0}\nv_exp_f32 v{vT0}, v{vT0}")
        a(f"v_mul_f32 v{vT1}, v{vT0}, v{vSt+1}")
        a(f"v_add_f32_dpp v{vT1}, v{vT1}, v{vT1} {q1}")
        a(f"v_add_f32_dpp v{vT1}, v{vT1}, v{vT1} {q2}")
        a(f"v_rcp_f32 v{vT1}, v{vT1}\nv_mul_f32 v{vT0}, v{vT0}, v{vT1}")
        for i in range(8): a(f"v_mul_f32 v{vSA+i}, v{vSA+i}, v{vT0}")
        for q in (q1, q2):
            for i in range(8): a(f"v_add_f32_dpp v{vSA+i}, v{vSA+i}, v{vSA+i} {q}")
        for i in range(4): a(f"v_cvt_pk_bf16_f32 v{vP+i}, v{vSA+2*i}, v{vSA+2*i+1}")
        a(f"ds_write_b64 v{vImg}, {vr(vP,2)}\nds_write_b64 v{vImg}, {vr(vP+2,2)} offset:512")
        a("s_waitcnt lgkmcnt(0)\ns_barrier")
        for m in range(4): a(f"ds_read_b128 {vr(vB+4*m)}, v{vBop} offset:{256*m}")
        for m in range(4):
            a(f"s_waitcnt lgkmcnt({3-m})")
            for tl in range(4):
                a(f"v_mfma_f32_16x16x32_bf16 {vr(vAcc+4*tl)}, {vr(vA+16*tl+4*m)}, {vr(vB+4*m)}, {'0' if m == 0 else vr(vAcc+4*tl)}")
        self.pub_voff(vPub, vT0, 64)
        a(f"s_and_b32 s{so}, s{sJ}, 1\ns_lshl_b32 s{so}, s{so}, 2\ns_add_u32 s{so}, s{so}, s{sW}\ns_lshl_b32 s{so}, s{so}, 15")
        a(f"s_lshl_b32 s{sT}, s{sH}, 8\ns_add_u32 s{so}, s{so}, s{sT}\ns_add_u32 s{so}, s{so}, {YY}")
        for tl in range(4): self.tag(vB+16+4*tl, vAcc+4*tl)
        self.pubmask(True)
        for tl in range(4):
            a(f"buffer_store_dwordx4 {vr(vB+16+4*tl)}, v{vPub}, {sr(SRD_WS)}, s{so} offen sc1")
            if tl < 3: a(f"s_add_u32 s{so}, s{so}, 8192")
        self.pubmask(False)
        self.stamp(7)
        a("s_branch L_exit")

    def roleA(self):
        a = self.a; L = self.vL; R = Regs(8)
        a.label("L_roleA")
        vT0, vT1, vT2, vT3 = [R.get() for _ in range(4)]
        vKo = R.get(4); vVo = R.get(2); vKr = R.get(4); vVt = R.get(2)
        vQrow, vQim, vQb, vPw, vPb, vPub, vMx = [R.get() for _ in range(7)]
        vQP = R.get(32, 4)
        vQ = R.get(16, 4); vP = R.get(8, 4); vS = R.get(16, 4); vK = R.get(64, 4)
        vAcc = R.get(8, 4); vVf = R.get(16, 4); vPB = R.get(32, 4)
        vM, vLs = R.get(), R.get()
        self.maxv = max(self.maxv, R.max)
        sB, sS_, so = sU + 2, sU + 3, sU + 1
        self.nonce_start()
        self.srd(SRD_A, P_K, 1 << 25); self.srd(SRD_B, P_V, 1 << 25)
        a(f"s_lshr_b32 s{sB}, s{sSLOT}, 2\ns_and_b32 s{sS_}, s{sSLOT}, 3")
        sKV = sU + 4
        a(f"s_lshl_b32 s{sKV}, s{sB}, 3\ns_add_u32 s{sKV}, s{sKV}, s{sXCD}\ns_lshl_b32 s{sKV}, s{sKV}, 20\ns_lshl_b32 s{sT}, s{sS_}, 16\ns_add_u32 s{sKV}, s{sKV}, s{sT}\ns_add_u32 s{sKV}, s{sKV}, {3072*256}")
        a(f"v_lshrrev_b32 v{vT0}, 4, v{L}\nv_and_b32 v{vT1}, 15, v{L}\nv_xor_b32 v{vT1}, v{vT1}, v{vT0}")
        a(f"v_lshlrev_b32 v{vT1}, 4, v{vT1}\nv_lshl_add_u32 v{vKo}, v{vT0}, 8, v{vT1}")
        for i in range(1, 4): a(f"v_xor_b32 v{vKo+i}, {64*i}, v{vKo}")
        a(f"s_lshl_b32 s{sT}, s{sW}, 14\ns_add_u32 s{so}, s{sKV}, s{sT}\ns_mov_b32 m0, s{sT}")
        for grp in range(4):
            if grp: a(f"s_add_u32 m0, m0, 4096\ns_add_u32 s{so}, s{so}, 4096")
            else: a("s_nop 0")
            for i in range(4):
                a(f"buffer_load_dwordx4 v{vKo+i}, {sr(SRD_A)}, s{so} offen offset:{1024*i} nt lds")
        a(f"v_lshrrev_b32 v{vT0}, 4, v{L}\nv_bfe_u32 v{vT1}, v{L}, 1, 3\nv_xor_b32 v{vT1}, v{vT1}, v{vT0}")
        a(f"v_lshlrev_b32 v{vT1}, 5, v{vT1}\nv_lshl_add_u32 v{vT1}, v{vT0}, 8, v{vT1}\nv_and_b32 v{vT0}, 1, v{L}\nv_lshl_add_u32 v{vVo}, v{vT0}, 4, v{vT1}")
        a(f"v_xor_b32 v{vVo+1}, 128, v{vVo}")
        sQ = sU + 5
        a(f"s_lshl_b32 s{sQ}, s{sB}, 3\ns_add_u32 s{sQ}, s{sQ}, s{sXCD}\ns_lshl_b32 s{sQ}, s{sQ}, 11\ns_add_u32 s{sQ}, s{sQ}, {QW}")
        a(f"v_lshlrev_b32 v{vQrow}, 4, v{L}")
        a(f"s_lshl_b32 s{sT}, s{sW}, 12\ns_add_u32 s{so}, s{sKV}, s{sT}\ns_add_u32 s{sT}, s{sT}, {L_T1}\ns_mov_b32 m0, s{sT}")
        for pc in range(4):
            a(f"buffer_load_dwordx4 {vr(vQP+8*pc)}, v{vQrow}, {sr(SRD_WS)}, s{sQ} offen sc1")
            a(f"buffer_load_dwordx4 {vr(vQP+8*pc+4)}, v{vQrow}, {sr(SRD_WS)}, s{sQ} offen offset:1024 sc1")
            if pc: a(f"s_add_u32 m0, m0, 16384\ns_add_u32 s{so}, s{so}, 16384\ns_nop 0")
            for i in range(4):
                a(f"buffer_load_dwordx4 v{vVo+(i&1)}, {sr(SRD_B)}, s{so} offen offset:{1024*i} nt lds")
        self.stamp(1)
        a(f"v_and_b32 v{vT0}, 15, v{L}\nv_lshrrev_b32 v{vT1}, 4, v{L}\nv_xor_b32 v{vT1}, v{vT1}, v{vT0}")
        a(f"v_lshlrev_b32 v{vT1}, 4, v{vT1}\nv_lshl_add_u32 v{vT1}, v{vT0}, 8, v{vT1}")
        a(f"s_lshl_b32 s{sT}, s{sW}, 14\nv_add_u32 v{vKr}, s{sT}, v{vT1}")
        for cc in range(1, 4): a(f"v_xor_b32 v{vKr+cc}, {64*cc}, v{vKr}")
        a(f"v_bfe_u32 v{vT0}, v{L}, 3, 2\nv_lshlrev_b32 v{vQim}, 8, v{vT0}\nv_lshrrev_b32 v{vT0}, 5, v{L}\nv_lshl_add_u32 v{vQim}, v{vT0}, 6, v{vQim}")
        a(f"v_bfe_u32 v{vT0}, v{L}, 1, 2\nv_lshl_add_u32 v{vQim}, v{vT0}, 4, v{vQim}\nv_and_b32 v{vT0}, 1, v{L}\nv_lshl_add_u32 v{vQim}, v{vT0}, 3, v{vQim}")
        a(f"s_lshl_b32 s{sT}, s{sW}, 10\ns_add_u32 s{sT}, s{sT}, {A_QI}\nv_add_u32 v{vQim}, s{sT}, v{vQim}")
        self.bop_addr(vQb, vT0, 0)
        a(f"v_add_u32 v{vPb}, {A_PI}, v{vQb}\nv_add_u32 v{vQb}, s{sT}, v{vQb}")
        a(f"s_lshl_b32 s{sT}, s{sW}, 9\nv_add_u32 v{vPw}, s{sT}, v{vPb}")
        a(f"v_and_b32 v{vMx}, 3, v{L}\nv_lshlrev_b32 v{vMx}, 4, v{vMx}\nv_add_u32 v{vMx}, {A_MX}, v{vMx}")
        a(f"v_lshrrev_b32 v{vT0}, 2, v{L}\nv_and_b32 v{vT1}, 7, v{vT0}\ns_lshl_b32 s{sT}, s{sW}, 1\nv_xor_b32 v{vT1}, s{sT}, v{vT1}")
        a(f"v_lshlrev_b32 v{vT1}, 5, v{vT1}\nv_lshl_add_u32 v{vT1}, v{vT0}, 8, v{vT1}\nv_and_b32 v{vT0}, 3, v{L}\nv_lshl_add_u32 v{vT1}, v{vT0}, 3, v{vT1}")
        a(f"v_add_u32 v{vVt}, {L_T1}, v{vT1}\nv_xor_b32 v{vVt+1}, 32, v{vVt}")
        a("s_waitcnt vmcnt(24)")
        for t in range(4):
            for cc in range(4):
                a(f"ds_read_b128 {vr(vK+16*t+4*cc)}, v{vKr+cc} offset:{4096*t}")
            if t % 2 == 1: a("s_waitcnt lgkmcnt(0)")
        self.stamp(2)
        self.get_nonce()
        qok = self.lab("qok")
        for pc in range(4):
            nxt = self.lab("qn")
            a(f"s_waitcnt vmcnt({22-6*pc})")
            self.check(vQP+8*pc, vT0, vT1, True); self.check(vQP+8*pc+4, vT0, vT1, False)
            a(f"s_cmp_eq_u64 s[{sBAD}:{sBAD+1}], 0\ns_cbranch_scc0 {nxt}")
            for i in range(4): a(f"v_cvt_pk_bf16_f32 v{vP+i}, v{vQP+8*pc+2*i}, v{vQP+8*pc+2*i+1}")
            a(f"s_branch {qok}")
            a.label(nxt)
        self.poll([f"buffer_load_dwordx4 {vr(vQP)}, v{vQrow}, {sr(SRD_WS)}, s{sQ} offen sc1",
                   f"buffer_load_dwordx4 {vr(vQP+4)}, v{vQrow}, {sr(SRD_WS)}, s{sQ} offen offset:1024 sc1"],
                  [vQP, vQP+4], vT0, vT1)
        for i in range(4): a(f"v_cvt_pk_bf16_f32 v{vP+i}, v{vQP+2*i}, v{vQP+2*i+1}")
        a.label(qok)
        self.stamp(3)
        a(f"ds_write_b64 v{vQim}, {vr(vP,2)}\nds_write_b64 v{vQim}, {vr(vP+2,2)} offset:128")
        a("s_waitcnt lgkmcnt(0)")
        for cc in range(4): a(f"ds_read_b128 {vr(vQ+4*cc)}, v{vQb} offset:{256*cc}")
        for cc in range(4):
            a(f"s_waitcnt lgkmcnt({3-cc})")
            for t in range(4):
                a(f"v_mfma_f32_16x16x32_bf16 {vr(vS+4*t)}, {vr(vK+16*t+4*cc)}, {vr(vQ+4*cc)}, {'0' if cc == 0 else vr(vS+4*t)}")
        a(f"v_max3_f32 v{vM}, v{vS}, v{vS+1}, v{vS+2}")
        for i in range(3, 15, 2): a(f"v_max3_f32 v{vM}, v{vM}, v{vS+i}, v{vS+i+1}")
        a(f"v_max_f32 v{vM}, v{vM}, v{vS+15}")
        self.rowreduce([vM], [vT0], "max")
        a(f"s_lshl_b32 s{sT}, s{sW}, 2\nv_add_u32 v{vT0}, s{sT}, v{vMx}\nds_write_b32 v{vT0}, v{vM}")
        a("s_waitcnt lgkmcnt(0)\ns_barrier")
        a(f"ds_read_b128 {vr(vP)}, v{vMx}\ns_waitcnt lgkmcnt(0)")
        a(f"v_max3_f32 v{vM}, v{vP}, v{vP+1}, v{vP+2}\nv_max_f32 v{vM}, v{vM}, v{vP+3}")
        sC = sU + 6
        a(f"s_mov_b32 s{sC}, 0x3e0293ee")
        a(f"v_mul_f32 v{vM}, s{sC}, v{vM}")
        for i in range(16): a(f"v_fma_f32 v{vS+i}, v{vS+i}, s{sC}, -v{vM}")
        for i in range(16): a(f"v_exp_f32 v{vS+i}, v{vS+i}")
        for i in range(8): a(f"v_cvt_pk_bf16_f32 v{vP+i}, v{vS+2*i}, v{vS+2*i+1}")
        for t in range(4):
            a(f"ds_write_b64 v{vPw}, {vr(vP+2*t,2)} offset:{(t>>1)*256+(t&1)*8}")
        a(f"v_add_f32 v{vLs}, v{vS}, v{vS+1}")
        for i in range(2, 16): a(f"v_add_f32 v{vLs}, v{vLs}, v{vS+i}")
        self.rowreduce([vLs], [vT0], "add")
        a(f"s_lshl_b32 s{sT}, s{sW}, 2\nv_add_u32 v{vT0}, s{sT}, v{vMx}\nds_write_b32 v{vT0}, v{vLs} offset:{A_LS-A_MX}")
        a("s_waitcnt lgkmcnt(0)\ns_barrier")
        for m in range(8): a(f"ds_read_b128 {vr(vPB+4*m)}, v{vPb} offset:{256*m}")
        a(f"ds_read_b128 {vr(vP)}, v{vMx} offset:{A_LS-A_MX}")
        a("s_waitcnt lgkmcnt(0)")
        a(f"v_add_f32 v{vLs}, v{vP}, v{vP+1}\nv_add_f32 v{vT0}, v{vP+2}, v{vP+3}\nv_add_f32 v{vLs}, v{vLs}, v{vT0}")
        self.stamp(4)
        for pc in range(4):
            a(f"s_waitcnt vmcnt({max(0, 18-6*pc)})\ns_barrier")
            for k in range(2):
                for d in range(2):
                    m = 2*pc + k
                    self.tr_pair(vVf+8*k+4*d, vVt+d, 8192*m, 8192*m + 4096)
            for k in range(2):
                for d in range(2):
                    m = 2*pc + k
                    a(f"s_waitcnt lgkmcnt({2*(3-(2*k+d))})")
                    a(f"v_mfma_f32_16x16x32_bf16 {vr(vAcc+4*d)}, {vr(vVf+8*k+4*d)}, {vr(vPB+4*m)}, {'0' if m == 0 else vr(vAcc+4*d)}")
        self.stamp(5)
        self.pub_voff(vPub, vT0, 512)
        a(f"s_lshl_b32 s{so}, s{sB}, 3\ns_add_u32 s{so}, s{so}, s{sXCD}\ns_lshl_b32 s{sKV}, s{so}, 8\ns_lshl_b32 s{so}, s{so}, 2\ns_add_u32 s{so}, s{so}, s{sS_}\ns_lshl_b32 s{so}, s{so}, 11")
        a(f"s_lshl_b32 s{sT}, s{sW}, 7\ns_add_u32 s{so}, s{so}, s{sT}\ns_add_u32 s{so}, s{so}, {OO}")
        self.tag(vP, vAcc); self.tag(vP+4, vAcc+4)
        a(f"v_mov_b32 v{vS}, v{vM}\nv_mov_b32 v{vS+1}, v{vLs}\nv_mov_b32 v{vS+2}, 0\nv_mov_b32 v{vS+3}, 0")
        self.tag(vS+4, vS)
        a(f"v_and_b32 v{vT0}, 15, v{L}\nv_lshlrev_b32 v{vT0}, 6, v{vT0}")
        a(f"s_lshl_b32 s{sT}, s{sS_}, 4\ns_add_u32 s{sKV}, s{sKV}, s{sT}\ns_add_u32 s{sKV}, s{sKV}, {ST}")
        self.pubmask(True)
        a(f"buffer_store_dwordx4 {vr(vP)}, v{vPub}, {sr(SRD_WS)}, s{so} offen sc1")
        a(f"buffer_store_dwordx4 {vr(vP+4)}, v{vPub}, {sr(SRD_WS)}, s{so} offen offset:64 sc1")
        nost = self.lab("nost")
        a(f"s_cmp_lg_u32 s{sW}, 0\ns_cbranch_scc1 {nost}")
        a(f"s_mov_b64 exec, 15")
        a(f"buffer_store_dwordx4 {vr(vS+4)}, v{vT0}, {sr(SRD_WS)}, s{sKV} offen sc1")
        a.label(nost)
        self.pubmask(False)
        self.stamp(6)
        a(f"s_cmp_lg_u32 s{sS_}, 0\ns_cbranch_scc1 L_exit")
        sTT = sU + 7
        a(f"s_lshl_b32 s{sTT}, s{sB}, 3\ns_add_u32 s{sTT}, s{sTT}, s{sXCD}")
        vX, vGA, vGB, vX1 = vK, vK+4, vK+8, vK+12
        vD = vK + 16
        vGo, vLin, vRw, vRr = vQrow, vQim, vQb, vPw
        self.srd(SRD_A, P_X, 4096); self.srd(SRD_B, P_OUT, 4096)
        a(f"v_bfe_u32 v{vT0}, v{L}, 2, 2\nv_and_b32 v{vT1}, 3, v{L}")
        a(f"v_lshlrev_b32 v{vT2}, 10, v{vT0}\nv_lshl_add_u32 v{vT2}, v{vT1}, 3, v{vT2}\ns_lshl_b32 s{sT}, s{sTT}, 5\nv_add_u32 v{vT2}, s{sT}, v{vT2}")
        a(f"v_lshlrev_b32 v{vGo}, 11, v{vT0}\nv_lshl_add_u32 v{vGo}, v{vT1}, 4, v{vGo}\ns_lshl_b32 s{sT}, s{sTT}, 6\nv_add_u32 v{vGo}, s{sT}, v{vGo}")
        a(f"buffer_load_dwordx2 {vr(vD,2)}, v{vT2}, {sr(SRD_A)}, 0 offen")
        a(f"v_lshlrev_b32 v{vLin}, 4, v{L}")
        a(f"s_lshl_b32 s{sT}, s{sW}, 8\nv_and_b32 v{vT0}, 15, v{L}\nv_lshlrev_b32 v{vT0}, 4, v{vT0}\nv_add_u32 v{vRr}, {A_RB}, v{vT0}")
        a(f"v_lshrrev_b32 v{vT1}, 4, v{L}\nv_lshl_add_u32 v{vRw}, v{vT1}, 2, v{vRr}\nv_add_u32 v{vRw}, s{sT}, v{vRw}")
        s0, s1 = sU + 8, sU + 9
        a(f"s_mov_b32 s{s0}, {MOD+2*8192}")
        a("s_waitcnt vmcnt(0)")
        self.unpack_bf16x4(vX, vD)
        self.poll([f"buffer_load_dwordx4 {vr(vGA)}, v{vGo}, {sr(SRD_WS)}, s{s0} offen sc1"], [vGA], vT0, vT1)
        def reduce_sets(n):
            for k in range(1, n):
                for i in range(4): a(f"v_add_f32 v{vD+i}, v{vD+i}, v{vD+4*k+i}")
            a(f"v_permlane16_swap_b32 v{vD}, v{vD+1}\nv_permlane16_swap_b32 v{vD+2}, v{vD+3}")
            a(f"v_add_f32 v{vD}, v{vD}, v{vD+1}\nv_add_f32 v{vD+2}, v{vD+2}, v{vD+3}")
            a(f"v_permlane32_swap_b32 v{vD}, v{vD+2}")
            a(f"v_add_f32 v{vD}, v{vD}, v{vD+2}")
            a(f"ds_write_b32 v{vRw}, v{vD}")
            a("s_waitcnt lgkmcnt(0)\ns_barrier")
            for w in range(4): a(f"ds_read_b128 {vr(vD+4*w)}, v{vRr} offset:{256*w}")
            a("s_waitcnt lgkmcnt(0)")
            for i in range(4): a(f"v_add_f32 v{vD+i}, v{vD+i}, v{vD+4+i}\nv_add_f32 v{vD+8+i}, v{vD+8+i}, v{vD+12+i}")
            for i in range(4): a(f"v_add_f32 v{vD+i}, v{vD+i}, v{vD+8+i}")
        a(f"s_lshl_b32 s{s0}, s{sTT}, 13\ns_lshl_b32 s{sT}, s{sW}, 11\ns_add_u32 s{s0}, s{s0}, s{sT}\ns_add_u32 s{s0}, s{s0}, {YY}")
        self.poll([f"buffer_load_dwordx4 {vr(vD)}, v{vLin}, {sr(SRD_WS)}, s{s0} offen sc1",
                   f"buffer_load_dwordx4 {vr(vD+4)}, v{vLin}, {sr(SRD_WS)}, s{s0} offen offset:1024 sc1"],
                  [vD, vD+4], vT0, vT1)
        self.stamp(7)
        reduce_sets(2)
        for i in range(4): a(f"v_fma_f32 v{vX1+i}, v{vGA+i}, v{vD+i}, v{vX+i}")
        self.tag(vD, vX1)
        a(f"s_mov_b32 s{s0}, {X1}")
        nox = self.lab("nox")
        a(f"s_cmp_lg_u32 s{sW}, 0\ns_cbranch_scc1 {nox}\ns_mov_b64 exec, 0xffff")
        a(f"buffer_store_dwordx4 {vr(vD)}, v{vGo}, {sr(SRD_WS)}, s{s0} offen sc1")
        a("s_mov_b64 exec, -1")
        a.label(nox)
        self.stamp(8)
        a(f"s_mov_b32 s{s0}, {MOD+5*8192}")
        self.poll([f"buffer_load_dwordx4 {vr(vGB)}, v{vGo}, {sr(SRD_WS)}, s{s0} offen sc1"], [vGB], vT0, vT1)
        a(f"s_mul_i32 s{s0}, s{sTT}, {NM*256}\ns_lshl_b32 s{sT}, s{sW}, 10\ns_add_u32 s{s0}, s{s0}, s{sT}\ns_add_u32 s{s0}, s{s0}, {OP}")
        a(f"s_add_u32 s{s1}, s{s0}, 8192")
        three = self.lab("three"); got = self.lab("got")
        base = [f"buffer_load_dwordx4 {vr(vD)}, v{vLin}, {sr(SRD_WS)}, s{s0} offen sc1"]
        sx = sU + 10
        a(f"s_add_u32 s{sx}, s{s0}, 4096\ns_add_u32 s{sx+1}, s{s0}, 12288")
        l3 = [f"buffer_load_dwordx4 {vr(vD)}, v{vLin}, {sr(SRD_WS)}, s{s0} offen sc1",
              f"buffer_load_dwordx4 {vr(vD+4)}, v{vLin}, {sr(SRD_WS)}, s{sx} offen sc1",
              f"buffer_load_dwordx4 {vr(vD+8)}, v{vLin}, {sr(SRD_WS)}, s{s1} offen sc1"]
        a(f"s_cmp_ge_u32 s{sW}, 2\ns_cbranch_scc1 {three}")
        self.poll(l3 + [f"buffer_load_dwordx4 {vr(vD+12)}, v{vLin}, {sr(SRD_WS)}, s{sx+1} offen sc1"], [vD, vD+4, vD+8, vD+12], vT0, vT1)
        for i in range(4): a(f"v_add_f32 v{vD+8+i}, v{vD+8+i}, v{vD+12+i}")
        a(f"s_branch {got}")
        a.label(three)
        self.poll(l3, [vD, vD+4, vD+8], vT0, vT1)
        a.label(got)
        self.stamp(9)
        a("s_barrier")
        reduce_sets(3)
        for i in range(4): a(f"v_fma_f32 v{vX1+i}, v{vGB+i}, v{vD+i}, v{vX1+i}")
        a(f"v_cvt_pk_bf16_f32 v{vD}, v{vX1}, v{vX1+1}\nv_cvt_pk_bf16_f32 v{vD+1}, v{vX1+2}, v{vX1+3}")
        a(f"s_cmp_lg_u32 s{sW}, 0\ns_cbranch_scc1 L_exit\ns_mov_b64 exec, 0xffff")
        a(f"buffer_store_dwordx2 {vr(vD,2)}, v{vT2}, {sr(SRD_B)}, 0 offen")
        a("s_mov_b64 exec, -1")
        self.stamp(10)
        a("s_branch L_exit")

    def epilogue(self):
        a = self.a
        a.label("L_exit")
        if self.prof:
            a("s_mov_b64 exec, -1")
            a(f"s_memrealtime s[{sSTAMPT}:{sSTAMPT+1}]\ns_waitcnt lgkmcnt(0)\ns_mov_b32 s{sSTAMP+15}, s{sSTAMPT}")
            a("v_mov_b32 v8, 0")
            for i in range(16): a(f"v_writelane_b32 v8, s{sSTAMP+i}, {i}")
            a(f"s_lshl_b32 s{sT}, s2, 2\ns_add_u32 s{sT}, s{sT}, s{sW}\ns_lshl_b32 s{sT}, s{sT}, 6\ns_add_u32 s{sT}, s{sT}, {PROF}")
            a(f"v_lshlrev_b32 v9, 2, v{self.vL}\ns_mov_b64 exec, 0xffff")
            a(f"buffer_store_dword v8, v9, {sr(SRD_WS)}, s{sT} offen\ns_waitcnt vmcnt(0)")
        a.label("L_end")
        a("s_endpgm")

    def build(self):
        self.prologue(); self.roleG(); self.roleQ(); self.roleA(); self.epilogue()
        body = fix_hazards(self.a.lines)
        nv = (self.maxv + 7) // 8 * 8
        hdr = open("adaLN_cond__sliding_block_cached__glu_gated_glu__decode.s.ref").read().split("; Override")[0]
        out = hdr + f"; @launch grid=(256,1,1) block=(256,1,1) lds={LDS_BYTES}\n"
        out += f'.amdgcn_target "amdgcn-amd-amdhsa--gfx950"\n.text\n.globl {NAME}\n.p2align 8\n.type {NAME},@function\n{NAME}:\n'
        out += "\n".join(("" if l.endswith(":") else "  ") + l for l in body) + "\n"
        out += f""".section .rodata,"a"
.p2align 6
.amdhsa_kernel {NAME}
  .amdhsa_next_free_vgpr {nv}
  .amdhsa_next_free_sgpr 102
  .amdhsa_accum_offset {nv}
  .amdhsa_group_segment_fixed_size 0
  .amdhsa_kernarg_size 112
  .amdhsa_user_sgpr_count 2
  .amdhsa_user_sgpr_kernarg_segment_ptr 1
  .amdhsa_system_sgpr_workgroup_id_x 1
  .amdhsa_float_denorm_mode_32 3
.end_amdhsa_kernel
"""
        return out

if __name__ == "__main__":
    prof = "--prof" in sys.argv
    outp = [x for x in sys.argv[1:] if not x.startswith("--")]
    s = Gen(prof=prof).build()
    if outp: open(outp[0], "w").write(s)
    else: print(s)
```

```python
import sys
from asmlib import Asm, fix_hazards

NAME = "adaLN_cond__sliding_block_cached__glu_gated_glu__decode_kernel"

MOD, QW, OO, ST, YY, X1, OP, PROF = 0x0, 0x10000, 0x20000, 0x60000, 0x80000, 0xC0000, 0xD0000, 0x180000
WS_SIZE = 0x200000
NM = 56
L_T0, L_T1 = 0, 65536
L_IMG = 131072
A_QI, A_PI, A_MX, A_LS, A_RB = 131072, 135168, 137216, 137280, 137472
Q_HI, Q_OI = 131072, 135168
G_WG, G_WU, G_CI, G_SU = 65536, 98304, 131072, 135168
LDS_BYTES = 139264
sW, sXCD, sSLOT, sNONCE, sT = 3, 4, 5, 6, 7
SRD_WS, SRD_A, SRD_B, SRD_C, SRD_D = 8, 12, 44, 48, 52
P_X, P_K, P_V, P_WQ, P_WO, P_BX, P_WG, P_WU, P_WD, P_C, P_WM, P_OUT, P_DBG, P_WS = 16, 18, 20, 22, 24, 26, 28, 30, 32, 34, 36, 38, 40, 42
sSELA, sSEL0 = 56, 57
sBAD, sPUB, sTO = 62, 64, 66
sU = 67
sSTAMPT, sSTAMP = 80, 82
TIMEOUT = 200000

def sr(r, n=4): return f"s[{r}:{r+n-1}]"
def vr(r, n=4): return f"v[{r}:{r+n-1}]"

class Regs:
    def __init__(self, start): self.n = start; self.max = start
    def get(self, k=1, align=1):
        self.n = (self.n + align - 1) // align * align
        r = self.n; self.n += k; self.max = max(self.max, self.n); return r

class Gen:
    def __init__(self, prof=False, opts=None):
        self.a = Asm(); self.prof = prof; self.o = opts or {}
        self.uid = 0; self.maxv = 0
    def lab(self, p):
        self.uid += 1; return f"L_{p}_{self.uid}"
    def srd(self, dst, ptr, size):
        a = self.a
        a(f"s_mov_b32 s{dst}, s{ptr}\ns_mov_b32 s{dst+1}, s{ptr+1}\ns_mov_b32 s{dst+2}, {size}\ns_mov_b32 s{dst+3}, 0x20000")
    def stamp(self, i):
        if not self.prof: return
        self.a(f"s_memrealtime s[{sSTAMPT}:{sSTAMPT+1}]\ns_waitcnt lgkmcnt(0)\ns_mov_b32 s{sSTAMP+i}, s{sSTAMPT}")
    def tag(self, dst, src):
        for i in range(4):
            self.a(f"v_perm_b32 v{dst+i}, v{src+i}, v{self.vN}, s{sSEL0+i}")
    def check(self, d, t0, t1, first):
        a = self.a
        a(f"v_perm_b32 v{t0}, v{d+1}, v{d}, s{sSELA}")
        a(f"v_perm_b32 v{t1}, v{d+3}, v{d+2}, s{sSELA}")
        a(f"v_lshl_or_b32 v{t0}, v{t1}, 16, v{t0}")
        a(f"v_cmp_ne_u32 vcc, s{sNONCE}, v{t0}")
        a(f"s_mov_b64 s[{sBAD}:{sBAD+1}], vcc" if first else f"s_or_b64 s[{sBAD}:{sBAD+1}], s[{sBAD}:{sBAD+1}], vcc")
    def poll(self, loads, sets, t0, t1, pre=None):
        a = self.a
        lp = self.lab("poll"); ok = self.lab("ok")
        a(f"s_mov_b32 s{sTO}, 0")
        a.label(lp)
        for l in loads: a(l)
        a("s_waitcnt vmcnt(0)")
        for i, d in enumerate(sets): self.check(d, t0, t1, i == 0)
        a(f"s_cmp_eq_u64 s[{sBAD}:{sBAD+1}], 0\ns_cbranch_scc1 {ok}")
        a(f"s_add_u32 s{sTO}, s{sTO}, 1\ns_cmp_lt_u32 s{sTO}, {TIMEOUT}\ns_cbranch_scc1 {lp}\ns_branch L_exit")
        a.label(ok)
    def allreduce2(self, x, y, t, u, op="add"):
        a = self.a
        ins = f"v_{op}_f32"
        rs = [x] + ([y] if y is not None else [])
        ts = [t, u]
        for ctl in ("quad_perm:[1,0,3,2]", "quad_perm:[2,3,0,1]", "row_half_mirror", "row_mirror"):
            for r in rs: a(f"{ins}_dpp v{r}, v{r}, v{r} {ctl} row_mask:0xf bank_mask:0xf")
        self.rowreduce(rs, ts, op)
    def rowreduce(self, rs, ts, op):
        a = self.a
        for sw in ("v_permlane16_swap_b32", "v_permlane32_swap_b32"):
            for r, t in zip(rs, ts): a(f"v_mov_b32 v{t}, v{r}")
            for r, t in zip(rs, ts): a(f"{sw} v{t}, v{r}")
            for r, t in zip(rs, ts): a(f"v_{op}_f32 v{r}, v{r}, v{t}")
    def unpack_bf16x4(self, dst, src):
        a = self.a
        a(f"v_lshlrev_b32 v{dst}, 16, v{src}\nv_and_b32 v{dst+1}, 0xffff0000, v{src}")
        a(f"v_lshlrev_b32 v{dst+2}, 16, v{src+1}\nv_and_b32 v{dst+3}, 0xffff0000, v{src+1}")
    def img_addr(self, dst, t, base):
        a = self.a; L = self.vL
        a(f"v_lshrrev_b32 v{dst}, 3, v{L}\nv_lshlrev_b32 v{dst}, 8, v{dst}")
        a(f"v_and_b32 v{t}, 3, v{L}\nv_lshl_add_u32 v{dst}, v{t}, 4, v{dst}")
        a(f"v_bfe_u32 v{t}, v{L}, 2, 1\nv_lshl_add_u32 v{dst}, v{t}, 3, v{dst}")
        a(f"s_lshl_b32 s{sT}, s{sW}, 6\ns_add_u32 s{sT}, s{sT}, {base}\nv_add_u32 v{dst}, s{sT}, v{dst}")
    def bop_addr(self, dst, t, base):
        a = self.a; L = self.vL
        a(f"v_and_b32 v{dst}, 3, v{L}\nv_lshlrev_b32 v{dst}, 6, v{dst}")
        a(f"v_lshrrev_b32 v{t}, 4, v{L}\nv_lshl_add_u32 v{dst}, v{t}, 4, v{dst}")
        a(f"v_add_u32 v{dst}, {base}, v{dst}")
    def layernorm(self, x, n8, t, u, s1, s2):
        a = self.a
        a(f"v_add_f32 v{s1}, v{x}, v{x+1}\nv_mul_f32 v{s2}, v{x}, v{x}")
        a(f"v_fmac_f32 v{s2}, v{x+1}, v{x+1}")
        for i in range(2, 8):
            a(f"v_add_f32 v{s1}, v{s1}, v{x+i}\nv_fmac_f32 v{s2}, v{x+i}, v{x+i}")
        self.allreduce2(s1, s2, t, u)
        a(f"v_mul_f32 v{s1}, 0x3b000000, v{s1}")
        a(f"v_mul_f32 v{s2}, 0x3b000000, v{s2}")
        a(f"v_fma_f32 v{s2}, -v{s1}, v{s1}, v{s2}")
        a(f"v_max_f32 v{s2}, 0, v{s2}")
        a(f"v_add_f32 v{s2}, 0x3727c5ac, v{s2}")
        a(f"v_rsq_f32 v{s2}, v{s2}")
        for i in range(8): a(f"v_sub_f32 v{x+i}, v{x+i}, v{s1}")
        for i in range(8): a(f"v_mul_f32 v{x+i}, v{x+i}, v{s2}")
    def write_img8(self, x, t, addr):
        a = self.a
        for i in range(4): a(f"v_cvt_pk_bf16_f32 v{t+i}, v{x+2*i}, v{x+2*i+1}")
        a(f"ds_write_b64 v{addr}, {vr(t,2)}\nds_write_b64 v{addr}, {vr(t+2,2)} offset:2048")
    def gemv_chain(self, A, B, vaddr, nst, acc, zero=True):
        a = self.a
        pre = min(8, nst)
        for m in range(pre): a(f"ds_read_b128 {vr(B+4*m)}, v{vaddr} offset:{256*m}")
        issued = pre
        for m in range(nst):
            a(f"s_waitcnt lgkmcnt({issued-m-1})")
            c = "0" if (m == 0 and zero) else vr(acc)
            a(f"v_mfma_f32_16x16x32_bf16 {vr(acc)}, {vr(A+4*m)}, {vr(B+4*m)}, {c}")
            if issued < nst:
                a(f"ds_read_b128 {vr(B+4*issued)}, v{vaddr} offset:{256*issued}"); issued += 1
    def pubmask(self, on):
        self.a(f"s_mov_b64 exec, s[{sPUB}:{sPUB+1}]" if on else "s_mov_b64 exec, -1")
    def get_nonce(self):
        a = self.a
        lp = self.lab("non"); ok = self.lab("nok")
        a(f"s_mov_b32 s{sTO}, 0")
        a.label(lp)
        a(f"v_cmp_eq_u32 vcc, 0, v{self.vN}")
        a(f"v_cndmask_b32 v{self.vN}, v{self.vN}, v{self.vN+2}, vcc")
        a(f"v_readfirstlane_b32 s{sNONCE}, v{self.vN}")
        a(f"s_cmp_lg_u32 s{sNONCE}, 0\ns_cbranch_scc1 {ok}")
        a(f"buffer_load_dword v{self.vN}, v{self.vZ}, {sr(SRD_D)}, 0 offen sc1")
        a(f"s_add_u32 s{sTO}, s{sTO}, 1\ns_cmp_lt_u32 s{sTO}, {TIMEOUT}\ns_cbranch_scc0 L_exit")
        a(f"s_waitcnt vmcnt(0)\ns_branch {lp}")
        a.label(ok)
        a(f"v_mov_b32 v{self.vN}, s{sNONCE}")
    def nonce_start(self):
        a = self.a
        other = self.lab("npoll"); done = self.lab("ndone")
        self.srd(SRD_D, P_DBG, 256)
        a(f"s_cmp_lt_u32 s2, 8\ns_cselect_b32 s{sT}, 1, 0\ns_cmp_eq_u32 s{sW}, 0\ns_cselect_b32 s{sT}, s{sT}, 0")
        a(f"s_cmp_eq_u32 s{sT}, 0\ns_cbranch_scc1 {other}")
        a(f"s_mul_i32 s{sT}, s{sU}, 0x9E3779B1\ns_max_u32 s{sT}, s{sT}, 1")
        a(f"v_mov_b32 v{self.vN}, s{sT}\nv_mov_b32 v{self.vN+1}, 0\nv_mov_b32 v{self.vN+2}, s{sT}")
        a(f"s_mov_b64 exec, 1")
        a(f"buffer_atomic_cmpswap {vr(self.vN,2)}, v{self.vZ}, {sr(SRD_D)}, 0 offen sc0 sc1")
        a(f"s_mov_b64 exec, -1")
        a(f"s_branch {done}")
        a.label(other)
        a(f"v_mov_b32 v{self.vN+2}, 0")
        a(f"buffer_load_dword v{self.vN}, v{self.vZ}, {sr(SRD_D)}, 0 offen sc1")
        a.label(done)

    def prologue(self):
        a = self.a
        a("s_cmp_ge_u32 s2, 256\ns_cbranch_scc1 L_end")
        a(f"s_load_dwordx16 s[16:31], s[0:1], 0\ns_load_dwordx8 s[32:39], s[0:1], 64\ns_load_dwordx4 s[40:43], s[0:1], 96")
        a(f"s_memrealtime s[{sU}:{sU+1}]" if False else f"s_memrealtime s[68:69]")
        self.vL, self.vN, self.vZ = 1, 2, 6
        a(f"v_lshrrev_b32 v{self.vZ}, 6, v0\nv_and_b32 v{self.vL}, 63, v0")
        a(f"v_readfirstlane_b32 s{sW}, v{self.vZ}")
        a(f"s_and_b32 s{sXCD}, s2, 7\ns_lshr_b32 s{sSLOT}, s2, 3")
        a(f"v_mov_b32 v{self.vZ}, 0")
        a(f"s_mov_b32 s{sSELA}, 0x0c0c0400")
        for i in range(4): a(f"s_mov_b32 s{sSEL0+i}, {0x07060500+i}")
        a(f"s_mov_b32 s{sPUB}, 0x000f000f\ns_mov_b32 s{sPUB+1}, 0x000f000f")
        if self.prof:
            for i in range(16): a(f"s_mov_b32 s{sSTAMP+i}, 0")
        a("s_waitcnt lgkmcnt(0)")
        a(f"s_mov_b32 s{sU}, s68")
        if self.prof: a(f"s_mov_b32 s{sSTAMP}, s68")
        self.srd(SRD_WS, P_WS, WS_SIZE)
        a(f"s_cmp_lt_u32 s{sSLOT}, 16\ns_cbranch_scc1 L_roleA")
        a(f"s_cmp_lt_u32 s{sSLOT}, 24\ns_cbranch_scc1 L_roleQ")
        a("s_branch L_roleG")

    def dma128_setup(self, voff, t, u, stride):
        a = self.a; L = self.vL
        a(f"v_lshrrev_b32 v{voff}, 3, v{L}\ns_mov_b32 s{sT}, {stride}\nv_mul_lo_u32 v{voff}, v{voff}, s{sT}")
        a(f"v_bfe_u32 v{t}, v{L}, 1, 2\nv_bfe_u32 v{u}, v{L}, 4, 2\nv_xor_b32 v{t}, v{t}, v{u}")
        a(f"v_lshl_add_u32 v{voff}, v{t}, 5, v{voff}")
        a(f"v_and_b32 v{t}, 1, v{L}\nv_lshl_add_u32 v{voff}, v{t}, 4, v{voff}")
    def dma128(self, srd, voff, sbase, stride, ldsbase):
        a = self.a
        so = sU + 1
        a(f"s_mul_i32 s{so}, s{sW}, {32*stride}\ns_add_u32 s{so}, s{so}, s{sbase}")
        a(f"s_lshl_b32 s{sT}, s{sW}, 12\ns_add_u32 s{sT}, s{sT}, {ldsbase}\ns_mov_b32 m0, s{sT}")
        for p in range(4):
            for i in range(4):
                a(f"buffer_load_dwordx4 v{voff}, {sr(srd)}, s{so} offen nt lds")
                if p == 3 and i == 3: break
                if i < 3: a(f"s_add_u32 m0, m0, 1024\ns_add_u32 s{so}, s{so}, {8*stride}")
                else: a(f"s_add_u32 m0, m0, {16384-3*1024}\ns_add_u32 s{so}, s{so}, {(128-24)*stride}")
    def tr128_addr(self, dst, t, u, base):
        a = self.a; L = self.vL
        a(f"v_lshrrev_b32 v{dst}, 2, v{L}\nv_lshlrev_b32 v{dst}, 7, v{dst}")
        a(f"v_bfe_u32 v{t}, v{L}, 3, 2\nv_xor_b32 v{t}, s{sW}, v{t}")
        a(f"v_lshl_add_u32 v{dst}, v{t}, 5, v{dst}")
        a(f"v_and_b32 v{t}, 3, v{L}\nv_lshl_add_u32 v{dst}, v{t}, 3, v{dst}")
        if base: a(f"v_add_u32 v{dst}, {base}, v{dst}")
    def tr_pair(self, dst, vaddr, off0, off1):
        self.a(f"ds_read_b64_tr_b16 {vr(dst,2)}, v{vaddr} offset:{off0}\nds_read_b64_tr_b16 {vr(dst+2,2)}, v{vaddr} offset:{off1}")

    def pub_voff(self, dst, t, bstride):
        a = self.a; L = self.vL
        a(f"v_and_b32 v{dst}, 15, v{L}\nv_mul_u32_u24 v{dst}, {bstride}, v{dst}")
        a(f"v_lshrrev_b32 v{t}, 4, v{L}\nv_lshl_add_u32 v{dst}, v{t}, 4, v{dst}")

    def roleG(self):
        a = self.a; L = self.vL; R = Regs(8)
        a.label("L_roleG")
        vT0, vT1 = R.get(), R.get()
        vImg, vBop, vVo, vTr = R.get(), R.get(), R.get(), R.get()
        vX = R.get(8, 2); vRaw = R.get(4, 2); vP = R.get(4, 4); vAcc = R.get(4, 4); vPub = R.get()
        vB = R.get(64, 4); vA = R.get(64, 4); vWD = R.get(32, 4)
        vCB = R.get(8, 4); vSB = R.get(8, 4); vG = R.get(8, 4); vAc2 = vA
        vS1, vS2 = R.get(), R.get()
        self.maxv = max(self.maxv, R.max)
        self.nonce_start()
        self.img_addr(vImg, vT0, G_CI)
        self.bop_addr(vBop, vT0, G_CI)
        a(f"s_cmp_ge_u32 s{sSLOT}, 30\ns_cbranch_scc1 L_G_mlp0")
        self.srd(SRD_A, P_WM, 512*6144); self.srd(SRD_B, P_C, 4096)
        a(f"s_lshl_b32 s{sT}, s{sW}, 10\nv_lshl_add_u32 v{vT0}, v{L}, 3, s{sT}")
        a(f"buffer_load_dwordx2 {vr(vRaw,2)}, v{vT0}, {sr(SRD_B)}, 0 offen")
        a(f"buffer_load_dwordx2 {vr(vRaw+2,2)}, v{vT0}, {sr(SRD_B)}, 0 offen offset:512")
        self.dma128_setup(vVo, vT0, vT1, 6144)
        sb = sU + 2
        a(f"s_sub_u32 s{sb}, s{sSLOT}, 24\ns_lshl_b32 s{sb}, s{sb}, 10\ns_lshl_b32 s{sT}, s{sXCD}, 7\ns_add_u32 s{sb}, s{sb}, s{sT}")
        self.dma128(SRD_A, vVo, sb, 6144, L_T0)
        self.stamp(1)
        self.tr128_addr(vTr, vT0, vT1, L_T0)
        a("s_waitcnt vmcnt(16)")
        self.unpack_bf16x4(vX, vRaw); self.unpack_bf16x4(vX+4, vRaw+2)
        for i in range(8): a(f"v_mul_f32 v{vG+i}, 0xbfb8aa3b, v{vX+i}")
        for i in range(8): a(f"v_exp_f32 v{vG+i}, v{vG+i}")
        for i in range(8): a(f"v_add_f32 v{vG+i}, 1.0, v{vG+i}")
        for i in range(8): a(f"v_rcp_f32 v{vG+i}, v{vG+i}")
        for i in range(8): a(f"v_mul_f32 v{vX+i}, v{vX+i}, v{vG+i}")
        self.write_img8(vX, vP, vImg)
        a("s_waitcnt lgkmcnt(0)\ns_barrier")
        for m in range(16):
            a(f"ds_read_b128 {vr(vB+4*m)}, v{vBop} offset:{256*m}")
            if m == 11: a("s_waitcnt lgkmcnt(4)")
        a("s_waitcnt lgkmcnt(0)")
        for p in range(4):
            a(f"s_waitcnt vmcnt({4*(3-p)})\ns_barrier")
            for k in range(4):
                m = 4*p + k
                self.tr_pair(vA+4*m, vTr, 4096*m, 4096*m + 2048)
            for k in range(4):
                m = 4*p + k
                a(f"s_waitcnt lgkmcnt({2*(3-k)})")
                a(f"v_mfma_f32_16x16x32_bf16 {vr(vAcc)}, {vr(vA+4*m)}, {vr(vB+4*m)}, {'0' if m == 0 else vr(vAcc)}")
        self.stamp(2)
        self.get_nonce()
        self.pub_voff(vPub, vT0, 2048)
        a(f"s_sub_u32 s{sb}, s{sSLOT}, 24\ns_lshl_b32 s{sb}, s{sb}, 13\ns_lshl_b32 s{sT}, s{sXCD}, 8\ns_add_u32 s{sb}, s{sb}, s{sT}")
        a(f"s_lshl_b32 s{sT}, s{sW}, 6\ns_add_u32 s{sb}, s{sb}, s{sT}")
        self.tag(vP, vAcc)
        self.pubmask(True)
        a(f"buffer_store_dwordx4 {vr(vP)}, v{vPub}, {sr(SRD_WS)}, s{sb} offen sc1")
        self.pubmask(False)
        self.stamp(3)
        a(f"s_cmp_eq_u32 s{sSLOT}, 24\ns_cbranch_scc1 L_exit")
        a("s_barrier")
        a("s_branch L_G_mlp")
        a.label("L_G_mlp0")
        a("s_waitcnt vmcnt(0)")
        self.get_nonce()
        a.label("L_G_mlp")
        sM = sU + 3
        a(f"s_mul_i32 s{sM}, s{sXCD}, 7\ns_add_u32 s{sM}, s{sM}, s{sSLOT}\ns_sub_u32 s{sM}, s{sM}, 25")
        self.srd(SRD_A, P_WG, 512*3584); self.srd(SRD_B, P_WU, 512*3584); self.srd(SRD_C, P_WD, 1792*1024)
        a(f"v_lshrrev_b32 v{vVo}, 2, v{L}\nv_mul_u32_u24 v{vVo}, 3584, v{vVo}")
        a(f"v_bfe_u32 v{vT0}, v{L}, 1, 1\nv_bfe_u32 v{vT1}, v{L}, 4, 1\nv_xor_b32 v{vT0}, v{vT0}, v{vT1}")
        a(f"v_lshl_add_u32 v{vVo}, v{vT0}, 5, v{vVo}\nv_and_b32 v{vT0}, 1, v{L}\nv_lshl_add_u32 v{vVo}, v{vT0}, 4, v{vVo}")
        so = sU + 1
        for srd, lb in ((SRD_A, G_WG), (SRD_B, G_WU)):
            a(f"s_mul_i32 s{so}, s{sW}, {8*16*3584}\ns_lshl_b32 s{sT}, s{sM}, 6\ns_add_u32 s{so}, s{so}, s{sT}")
            a(f"s_lshl_b32 s{sT}, s{sW}, 13\ns_add_u32 s{sT}, s{sT}, {lb}\ns_mov_b32 m0, s{sT}")
            for i in range(8):
                if i: a(f"s_add_u32 m0, m0, 1024\ns_add_u32 s{so}, s{so}, {16*3584}")
                else: a("s_nop 0")
                a(f"buffer_load_dwordx4 v{vVo}, {sr(srd)}, s{so} offen nt lds")
        a(f"s_lshl_b32 s{so}, s{sM}, 15\ns_lshl_b32 s{sT}, s{sW}, 13\ns_add_u32 s{so}, s{so}, s{sT}\ns_add_u32 s{sT}, s{sT}, {L_T0}\ns_mov_b32 m0, s{sT}")
        a(f"v_lshlrev_b32 v{vT1}, 4, v{L}")
        for i in range(8):
            a(f"v_xor_b32 v{vT0}, {32*i}, v{vT1}")
            if i: a(f"s_add_u32 m0, m0, 1024\ns_add_u32 s{so}, s{so}, 1024")
            a(f"buffer_load_dwordx4 v{vT0}, {sr(SRD_C)}, s{so} offen nt lds")
        self.stamp(4)
        vRow = vPub
        a(f"s_lshl_b32 s{sT}, s{sW}, 11\nv_lshl_add_u32 v{vRow}, v{L}, 4, s{sT}")
        sa, sb2 = sU + 4, sU + 5
        a(f"s_mov_b32 s{sa}, {MOD+4*8192}\ns_mov_b32 s{sb2}, {MOD+3*8192}")
        self.poll([f"buffer_load_dwordx4 {vr(vCB)}, v{vRow}, {sr(SRD_WS)}, s{sa} offen sc1",
                   f"buffer_load_dwordx4 {vr(vCB+4)}, v{vRow}, {sr(SRD_WS)}, s{sa} offen offset:1024 sc1",
                   f"buffer_load_dwordx4 {vr(vSB)}, v{vRow}, {sr(SRD_WS)}, s{sb2} offen sc1",
                   f"buffer_load_dwordx4 {vr(vSB+4)}, v{vRow}, {sr(SRD_WS)}, s{sb2} offen offset:1024 sc1"],
                  [vCB, vCB+4, vSB, vSB+4], vT0, vT1)
        for i in range(8): a(f"v_add_f32 v{vCB+i}, 1.0, v{vCB+i}")
        a("s_barrier")
        a(f"v_lshrrev_b32 v{vTr}, 2, v{L}\nv_lshlrev_b32 v{vTr}, 6, v{vTr}")
        a(f"s_and_b32 s{sT}, s{sW}, 1\nv_bfe_u32 v{vT0}, v{L}, 4, 1\nv_xor_b32 v{vT0}, s{sT}, v{vT0}\nv_lshl_add_u32 v{vTr}, v{vT0}, 5, v{vTr}")
        a(f"v_and_b32 v{vT0}, 3, v{L}\nv_lshl_add_u32 v{vTr}, v{vT0}, 3, v{vTr}")
        a(f"s_lshr_b32 s{sT}, s{sW}, 1\ns_lshl_b32 s{sT}, s{sT}, 15\ns_add_u32 s{sT}, s{sT}, {G_WG}\nv_add_u32 v{vTr}, s{sT}, v{vTr}")
        for m in range(16):
            self.tr_pair(vA+4*m, vTr, 2048*m, 2048*m + 1024)
            if m % 4 == 3: a("s_waitcnt lgkmcnt(0)")
        a(f"v_lshrrev_b32 v{vTr}, 2, v{L}\nv_and_b32 v{vT0}, 7, v{vTr}\nv_lshlrev_b32 v{vTr}, 10, v{vTr}")
        a(f"v_lshl_add_u32 v{vTr}, v{vT0}, 5, v{vTr}\nv_and_b32 v{vT0}, 3, v{L}\nv_lshl_add_u32 v{vTr}, v{vT0}, 3, v{vTr}")
        a(f"s_lshl_b32 s{sT}, s{sW}, 8\ns_add_u32 s{sT}, s{sT}, {L_T0}\nv_add_u32 v{vTr}, s{sT}, v{vTr}")
        for tl in range(8):
            a(f"v_xor_b32 v{vT0}, {32*tl}, v{vTr}")
            self.tr_pair(vWD+4*tl, vT0, 0, 16384)
            if tl % 4 == 3: a("s_waitcnt lgkmcnt(0)")
        self.stamp(5)
        a(f"s_mov_b32 s{sa}, {X1}")
        self.poll([f"buffer_load_dwordx4 {vr(vX)}, v{vRow}, {sr(SRD_WS)}, s{sa} offen sc1",
                   f"buffer_load_dwordx4 {vr(vX+4)}, v{vRow}, {sr(SRD_WS)}, s{sa} offen offset:1024 sc1"],
                  [vX, vX+4], vT0, vT1)
        self.stamp(6)
        self.layernorm(vX, None, vT0, vT1, vS1, vS2)
        for i in range(8): a(f"v_fma_f32 v{vX+i}, v{vX+i}, v{vCB+i}, v{vSB+i}")
        self.write_img8(vX, vP, vImg)
        a("s_waitcnt lgkmcnt(0)\ns_barrier")
        self.gemv_chain(vA, vB, vBop, 16, vAcc)
        skip = self.lab("up")
        a(f"s_cmp_ge_u32 s{sW}, 2\ns_cbranch_scc1 {skip}")
        for i in range(4): a(f"v_mul_f32 v{vAcc+i}, 0xbfb8aa3b, v{vAcc+i}")
        for i in range(4): a(f"v_exp_f32 v{vAcc+i}, v{vAcc+i}")
        for i in range(4): a(f"v_add_f32 v{vAcc+i}, 1.0, v{vAcc+i}")
        for i in range(4): a(f"v_rcp_f32 v{vAcc+i}, v{vAcc+i}")
        a.label(skip)
        a(f"v_and_b32 v{vT0}, 3, v{L}\nv_lshlrev_b32 v{vT0}, 7, v{vT0}\nv_lshrrev_b32 v{vT1}, 4, v{L}\nv_lshl_add_u32 v{vT0}, v{vT1}, 4, v{vT0}")
        a(f"v_add_u32 v{vS1}, {G_SU}, v{vT0}")
        a(f"s_lshr_b32 s{sT}, s{sW}, 1\ns_lshl_b32 s{sT}, s{sT}, 9\ns_and_b32 s{so}, s{sW}, 1\ns_lshl_b32 s{so}, s{so}, 6\ns_add_u32 s{sT}, s{sT}, s{so}")
        a(f"v_add_u32 v{vT0}, s{sT}, v{vS1}")
        self.pubmask(True)
        a(f"ds_write_b128 v{vT0}, {vr(vAcc)}")
        self.pubmask(False)
        a("s_waitcnt lgkmcnt(0)\ns_barrier")
        a(f"ds_read_b128 {vr(vX)}, v{vS1}\nds_read_b128 {vr(vX+4)}, v{vS1} offset:64")
        a(f"ds_read_b128 {vr(vG)}, v{vS1} offset:512\nds_read_b128 {vr(vG+4)}, v{vS1} offset:576")
        a("s_waitcnt lgkmcnt(0)")
        for i in range(8): a(f"v_mul_f32 v{vX+i}, v{vX+i}, v{vG+i}")
        for i in range(4): a(f"v_cvt_pk_bf16_f32 v{vP+i}, v{vX+2*i}, v{vX+2*i+1}")
        for tl in range(8):
            a(f"v_mfma_f32_16x16x32_bf16 {vr(vAc2+4*tl)}, {vr(vWD+4*tl)}, {vr(vP)}, 0")
        self.pub_voff(vPub, vT0, 64)
        a(f"s_mul_i32 s{so}, s{sW}, {8*NM*256}\ns_lshl_b32 s{sT}, s{sM}, 8\ns_add_u32 s{so}, s{so}, s{sT}\ns_add_u32 s{so}, s{so}, {OP}")
        for tl in range(8): self.tag(vB+4*tl, vAc2+4*tl)
        self.pubmask(True)
        for tl in range(8):
            a(f"buffer_store_dwordx4 {vr(vB+4*tl)}, v{vPub}, {sr(SRD_WS)}, s{so} offen sc1")
            if tl < 7: a(f"s_add_u32 s{so}, s{so}, {NM*256}")
        self.pubmask(False)
        self.stamp(7)
        a("s_branch L_exit")

    def roleQ(self):
        a = self.a; L = self.vL; R = Regs(8)
        a.label("L_roleQ")
        vT0, vT1 = R.get(), R.get()
        vImg, vBop, vVo, vTr, vRow, vPub = [R.get() for _ in range(6)]
        vS1, vS2 = R.get(), R.get()
        vX = R.get(8, 4); vRaw = R.get(4, 4); vP = R.get(4, 4); vAcc = R.get(16, 4)
        vSA = R.get(8, 4); vCA = R.get(8, 4); vSt = R.get(4, 4); vVo4 = R.get(4)
        vB = R.get(64, 4); vA = R.get(64, 4)
        self.maxv = max(self.maxv, R.max)
        self.nonce_start()
        self.srd(SRD_A, P_WQ, 512*8192); self.srd(SRD_B, P_X, 4096); self.srd(SRD_C, P_WO, 4096*1024)
        a(f"s_lshl_b32 s{sT}, s{sW}, 10\nv_lshl_add_u32 v{vT0}, v{L}, 3, s{sT}")
        a(f"buffer_load_dwordx2 {vr(vRaw,2)}, v{vT0}, {sr(SRD_B)}, 0 offen")
        a(f"buffer_load_dwordx2 {vr(vRaw+2,2)}, v{vT0}, {sr(SRD_B)}, 0 offen offset:512")
        self.dma128_setup(vVo, vT0, vT1, 8192)
        sJ, sb = sU + 3, sU + 2
        a(f"s_sub_u32 s{sJ}, s{sSLOT}, 16")
        a(f"s_lshl_b32 s{sb}, s{sXCD}, 10\ns_lshl_b32 s{sT}, s{sJ}, 7\ns_add_u32 s{sb}, s{sb}, s{sT}")
        self.dma128(SRD_A, vVo, sb, 8192, L_T0)
        self.stamp(1)
        self.img_addr(vImg, vT0, Q_HI)
        self.bop_addr(vBop, vT0, Q_HI)
        self.tr128_addr(vTr, vT0, vT1, L_T0)
        a(f"s_lshl_b32 s{sT}, s{sW}, 11\nv_lshl_add_u32 v{vRow}, v{L}, 4, s{sT}")
        a("s_waitcnt vmcnt(16)")
        self.unpack_bf16x4(vX, vRaw); self.unpack_bf16x4(vX+4, vRaw+2)
        self.layernorm(vX, None, vT0, vT1, vS1, vS2)
        a("s_waitcnt vmcnt(0)\ns_barrier")
        self.stamp(2)
        for m in range(16):
            self.tr_pair(vA+4*m, vTr, 4096*m, 4096*m + 2048)
            if m % 4 == 3: a("s_waitcnt lgkmcnt(0)")
        self.get_nonce()
        s0, s1 = sU + 4, sU + 5
        a(f"s_mov_b32 s{s0}, {MOD}\ns_mov_b32 s{s1}, {MOD+8192}")
        self.poll([f"buffer_load_dwordx4 {vr(vSA)}, v{vRow}, {sr(SRD_WS)}, s{s0} offen sc1",
                   f"buffer_load_dwordx4 {vr(vSA+4)}, v{vRow}, {sr(SRD_WS)}, s{s0} offen offset:1024 sc1",
                   f"buffer_load_dwordx4 {vr(vCA)}, v{vRow}, {sr(SRD_WS)}, s{s1} offen sc1",
                   f"buffer_load_dwordx4 {vr(vCA+4)}, v{vRow}, {sr(SRD_WS)}, s{s1} offen offset:1024 sc1"],
                  [vSA, vSA+4, vCA, vCA+4], vT0, vT1)
        self.stamp(3)
        for i in range(8): a(f"v_add_f32 v{vSA+i}, v{vSA+i}, v{vX+i}")
        for i in range(8): a(f"v_fmac_f32 v{vSA+i}, v{vX+i}, v{vCA+i}")
        self.write_img8(vSA, vP, vImg)
        a("s_waitcnt lgkmcnt(0)\ns_barrier")
        self.gemv_chain(vA, vB, vBop, 16, vAcc)
        self.pub_voff(vPub, vT0, 8*2048)
        so = sU + 1
        a(f"s_lshl_b32 s{so}, s{sXCD}, 11\ns_lshl_b32 s{sT}, s{sJ}, 8\ns_add_u32 s{so}, s{so}, s{sT}\ns_lshl_b32 s{sT}, s{sW}, 6\ns_add_u32 s{so}, s{so}, s{sT}\ns_add_u32 s{so}, s{so}, {QW}")
        self.tag(vP, vAcc)
        self.pubmask(True)
        a(f"buffer_store_dwordx4 {vr(vP)}, v{vPub}, {sr(SRD_WS)}, s{so} offen sc1")
        self.pubmask(False)
        self.stamp(4)
        a(f"v_lshrrev_b32 v{vT0}, 5, v{L}\nv_bfe_u32 v{vT1}, v{L}, 1, 4\nv_xor_b32 v{vT1}, v{vT1}, v{vT0}")
        a(f"v_lshlrev_b32 v{vT1}, 5, v{vT1}\nv_lshl_add_u32 v{vT1}, v{vT0}, 10, v{vT1}")
        a(f"v_and_b32 v{vT0}, 1, v{L}\nv_lshl_add_u32 v{vVo4}, v{vT0}, 4, v{vT1}")
        for i in range(1, 4): a(f"v_xor_b32 v{vVo4+i}, {64*i}, v{vVo4}")
        sH = sU + 6
        a(f"s_lshr_b32 s{sH}, s{sJ}, 1\ns_lshl_b32 s{sT}, s{sXCD}, 2\ns_add_u32 s{sH}, s{sH}, s{sT}")
        a(f"s_lshl_b32 s{so}, s{sH}, 17\ns_and_b32 s{sT}, s{sJ}, 1\ns_lshl_b32 s{sT}, s{sT}, 9\ns_add_u32 s{so}, s{so}, s{sT}")
        a(f"s_lshl_b32 s{sT}, s{sW}, 13\ns_add_u32 s{so}, s{so}, s{sT}")
        a(f"s_lshl_b32 s{sT}, s{sW}, 12\ns_add_u32 s{sT}, s{sT}, {L_T1}\ns_mov_b32 m0, s{sT}")
        for p in range(4):
            for i in range(4):
                if i or p:
                    if i: a(f"s_add_u32 m0, m0, 1024\ns_add_u32 s{so}, s{so}, 2048")
                    else: a(f"s_add_u32 m0, m0, {16384-3072}\ns_add_u32 s{so}, s{so}, {32768-3*2048}")
                else: a("s_nop 0")
                a(f"buffer_load_dwordx4 v{vVo4+i}, {sr(SRD_C)}, s{so} offen nt lds")
        a(f"v_lshrrev_b32 v{vTr}, 2, v{L}\nv_and_b32 v{vT0}, 7, v{vTr}\nv_lshlrev_b32 v{vTr}, 9, v{vTr}")
        a(f"s_lshl_b32 s{sT}, s{sW}, 2\nv_xor_b32 v{vT0}, s{sT}, v{vT0}\nv_lshl_add_u32 v{vTr}, v{vT0}, 5, v{vTr}")
        a(f"v_and_b32 v{vT0}, 3, v{L}\nv_lshl_add_u32 v{vTr}, v{vT0}, 3, v{vTr}\nv_add_u32 v{vTr}, {L_T1}, v{vTr}")
        a(f"v_and_b32 v{vT0}, 3, v{L}\nv_lshlrev_b32 v{vRow}, 11, v{vT0}\nv_lshrrev_b32 v{vT1}, 2, v{L}\nv_lshl_add_u32 v{vRow}, v{vT1}, 4, v{vRow}")
        sO, sS = sU + 7, sU + 8
        a(f"s_lshl_b32 s{sO}, s{sW}, 3\ns_add_u32 s{sO}, s{sO}, s{sXCD}\ns_lshl_b32 s{sS}, s{sO}, 8\ns_lshl_b32 s{sO}, s{sO}, 13")
        a(f"s_lshr_b32 s{sT}, s{sJ}, 1\ns_lshl_b32 s{so}, s{sT}, 9\ns_add_u32 s{sO}, s{sO}, s{so}\ns_add_u32 s{sO}, s{sO}, {OO}")
        a(f"s_lshl_b32 s{sT}, s{sT}, 6\ns_add_u32 s{sS}, s{sS}, s{sT}\ns_add_u32 s{sS}, s{sS}, {ST}")
        a(f"v_lshlrev_b32 v{vS1}, 4, v{vT0}")
        a(f"v_lshrrev_b32 v{vT0}, 5, v{L}\nv_lshlrev_b32 v{vImg}, 8, v{vT0}\nv_bfe_u32 v{vT0}, v{L}, 2, 2\nv_lshl_add_u32 v{vImg}, v{vT0}, 4, v{vImg}")
        a(f"v_bfe_u32 v{vT0}, v{L}, 4, 1\nv_lshl_add_u32 v{vImg}, v{vT0}, 3, v{vImg}")
        a(f"s_lshl_b32 s{sT}, s{sW}, 6\ns_add_u32 s{sT}, s{sT}, {Q_OI}\nv_add_u32 v{vImg}, s{sT}, v{vImg}")
        self.bop_addr(vBop, vT0, Q_OI)
        a("s_waitcnt vmcnt(0)\ns_barrier")
        self.stamp(5)
        for tl in range(4):
            a(f"v_xor_b32 v{vT0}, {32*tl}, v{vTr}")
            for m in range(4):
                self.tr_pair(vA+16*tl+4*m, vT0, 16384*m, 16384*m + 8192)
            a("s_waitcnt lgkmcnt(0)")
        self.poll([f"buffer_load_dwordx4 {vr(vSA)}, v{vRow}, {sr(SRD_WS)}, s{sO} offen sc1",
                   f"buffer_load_dwordx4 {vr(vSA+4)}, v{vRow}, {sr(SRD_WS)}, s{sO} offen offset:256 sc1",
                   f"buffer_load_dwordx4 {vr(vSt)}, v{vS1}, {sr(SRD_WS)}, s{sS} offen sc1"],
                  [vSA, vSA+4, vSt], vT0, vT1)
        self.stamp(6)
        q1 = "quad_perm:[1,0,3,2] row_mask:0xf bank_mask:0xf"; q2 = "quad_perm:[2,3,0,1] row_mask:0xf bank_mask:0xf"
        a(f"v_max_f32_dpp v{vT0}, v{vSt}, v{vSt} {q1}")
        a(f"v_max_f32_dpp v{vT0}, v{vT0}, v{vT0} {q2}")
        a(f"v_sub_f32 v{vT0}, v{vSt}, v{vT0}\nv_exp_f32 v{vT0}, v{vT0}")
        a(f"v_mul_f32 v{vT1}, v{vT0}, v{vSt+1}")
        a(f"v_add_f32_dpp v{vT1}, v{vT1}, v{vT1} {q1}")
        a(f"v_add_f32_dpp v{vT1}, v{vT1}, v{vT1} {q2}")
        a(f"v_rcp_f32 v{vT1}, v{vT1}\nv_mul_f32 v{vT0}, v{vT0}, v{vT1}")
        for i in range(8): a(f"v_mul_f32 v{vSA+i}, v{vSA+i}, v{vT0}")
        for q in (q1, q2):
            for i in range(8): a(f"v_add_f32_dpp v{vSA+i}, v{vSA+i}, v{vSA+i} {q}")
        for i in range(4): a(f"v_cvt_pk_bf16_f32 v{vP+i}, v{vSA+2*i}, v{vSA+2*i+1}")
        a(f"ds_write_b64 v{vImg}, {vr(vP,2)}\nds_write_b64 v{vImg}, {vr(vP+2,2)} offset:512")
        a("s_waitcnt lgkmcnt(0)\ns_barrier")
        for m in range(4): a(f"ds_read_b128 {vr(vB+4*m)}, v{vBop} offset:{256*m}")
        for m in range(4):
            a(f"s_waitcnt lgkmcnt({3-m})")
            for tl in range(4):
                a(f"v_mfma_f32_16x16x32_bf16 {vr(vAcc+4*tl)}, {vr(vA+16*tl+4*m)}, {vr(vB+4*m)}, {'0' if m == 0 else vr(vAcc+4*tl)}")
        self.pub_voff(vPub, vT0, 64)
        a(f"s_and_b32 s{so}, s{sJ}, 1\ns_lshl_b32 s{so}, s{so}, 2\ns_add_u32 s{so}, s{so}, s{sW}\ns_lshl_b32 s{so}, s{so}, 15")
        a(f"s_lshl_b32 s{sT}, s{sH}, 8\ns_add_u32 s{so}, s{so}, s{sT}\ns_add_u32 s{so}, s{so}, {YY}")
        for tl in range(4): self.tag(vB+16+4*tl, vAcc+4*tl)
        self.pubmask(True)
        for tl in range(4):
            a(f"buffer_store_dwordx4 {vr(vB+16+4*tl)}, v{vPub}, {sr(SRD_WS)}, s{so} offen sc1")
            if tl < 3: a(f"s_add_u32 s{so}, s{so}, 8192")
        self.pubmask(False)
        self.stamp(7)
        a("s_branch L_exit")

    def roleA(self):
        a = self.a; L = self.vL; R = Regs(8)
        a.label("L_roleA")
        vT0, vT1, vT2, vT3 = [R.get() for _ in range(4)]
        vKo = R.get(4); vVo = R.get(2); vKr = R.get(4); vVt = R.get(2)
        vQrow, vQim, vQb, vPw, vPb, vPub, vMx = [R.get() for _ in range(7)]
        vQP = R.get(32, 4)
        vQ = R.get(16, 4); vP = R.get(8, 4); vS = R.get(16, 4); vK = R.get(64, 4)
        vAcc = R.get(8, 4); vVf = R.get(16, 4); vPB = R.get(32, 4)
        vM, vLs = R.get(), R.get()
        self.maxv = max(self.maxv, R.max)
        sB, sS_, so = sU + 2, sU + 3, sU + 1
        self.nonce_start()
        self.srd(SRD_A, P_K, 1 << 25); self.srd(SRD_B, P_V, 1 << 25)
        a(f"s_lshr_b32 s{sB}, s{sSLOT}, 2\ns_and_b32 s{sS_}, s{sSLOT}, 3")
        sKV = sU + 4
        a(f"s_lshl_b32 s{sKV}, s{sB}, 3\ns_add_u32 s{sKV}, s{sKV}, s{sXCD}\ns_lshl_b32 s{sKV}, s{sKV}, 20\ns_lshl_b32 s{sT}, s{sS_}, 16\ns_add_u32 s{sKV}, s{sKV}, s{sT}\ns_add_u32 s{sKV}, s{sKV}, {3072*256}")
        a(f"v_lshrrev_b32 v{vT0}, 4, v{L}\nv_and_b32 v{vT1}, 15, v{L}\nv_xor_b32 v{vT1}, v{vT1}, v{vT0}")
        a(f"v_lshlrev_b32 v{vT1}, 4, v{vT1}\nv_lshl_add_u32 v{vKo}, v{vT0}, 8, v{vT1}")
        for i in range(1, 4): a(f"v_xor_b32 v{vKo+i}, {64*i}, v{vKo}")
        a(f"s_lshl_b32 s{sT}, s{sW}, 14\ns_add_u32 s{so}, s{sKV}, s{sT}\ns_mov_b32 m0, s{sT}")
        for grp in range(4):
            if grp: a(f"s_add_u32 m0, m0, 4096\ns_add_u32 s{so}, s{so}, 4096")
            else: a("s_nop 0")
            for i in range(4):
                a(f"buffer_load_dwordx4 v{vKo+i}, {sr(SRD_A)}, s{so} offen offset:{1024*i} nt lds")
        a(f"v_lshrrev_b32 v{vT0}, 4, v{L}\nv_bfe_u32 v{vT1}, v{L}, 1, 3\nv_xor_b32 v{vT1}, v{vT1}, v{vT0}")
        a(f"v_lshlrev_b32 v{vT1}, 5, v{vT1}\nv_lshl_add_u32 v{vT1}, v{vT0}, 8, v{vT1}\nv_and_b32 v{vT0}, 1, v{L}\nv_lshl_add_u32 v{vVo}, v{vT0}, 4, v{vT1}")
        a(f"v_xor_b32 v{vVo+1}, 128, v{vVo}")
        sQ = sU + 5
        a(f"s_lshl_b32 s{sQ}, s{sB}, 3\ns_add_u32 s{sQ}, s{sQ}, s{sXCD}\ns_lshl_b32 s{sQ}, s{sQ}, 11\ns_add_u32 s{sQ}, s{sQ}, {QW}")
        a(f"v_lshlrev_b32 v{vQrow}, 4, v{L}")
        a(f"s_lshl_b32 s{sT}, s{sW}, 12\ns_add_u32 s{so}, s{sKV}, s{sT}\ns_add_u32 s{sT}, s{sT}, {L_T1}\ns_mov_b32 m0, s{sT}")
        for pc in range(4):
            a(f"buffer_load_dwordx4 {vr(vQP+8*pc)}, v{vQrow}, {sr(SRD_WS)}, s{sQ} offen sc1")
            a(f"buffer_load_dwordx4 {vr(vQP+8*pc+4)}, v{vQrow}, {sr(SRD_WS)}, s{sQ} offen offset:1024 sc1")
            if pc: a(f"s_add_u32 m0, m0, 16384\ns_add_u32 s{so}, s{so}, 16384\ns_nop 0")
            for i in range(4):
                a(f"buffer_load_dwordx4 v{vVo+(i&1)}, {sr(SRD_B)}, s{so} offen offset:{1024*i} nt lds")
        self.stamp(1)
        a(f"v_and_b32 v{vT0}, 15, v{L}\nv_lshrrev_b32 v{vT1}, 4, v{L}\nv_xor_b32 v{vT1}, v{vT1}, v{vT0}")
        a(f"v_lshlrev_b32 v{vT1}, 4, v{vT1}\nv_lshl_add_u32 v{vT1}, v{vT0}, 8, v{vT1}")
        a(f"s_lshl_b32 s{sT}, s{sW}, 14\nv_add_u32 v{vKr}, s{sT}, v{vT1}")
        for cc in range(1, 4): a(f"v_xor_b32 v{vKr+cc}, {64*cc}, v{vKr}")
        a(f"v_bfe_u32 v{vT0}, v{L}, 3, 2\nv_lshlrev_b32 v{vQim}, 8, v{vT0}\nv_lshrrev_b32 v{vT0}, 5, v{L}\nv_lshl_add_u32 v{vQim}, v{vT0}, 6, v{vQim}")
        a(f"v_bfe_u32 v{vT0}, v{L}, 1, 2\nv_lshl_add_u32 v{vQim}, v{vT0}, 4, v{vQim}\nv_and_b32 v{vT0}, 1, v{L}\nv_lshl_add_u32 v{vQim}, v{vT0}, 3, v{vQim}")
        a(f"s_lshl_b32 s{sT}, s{sW}, 10\ns_add_u32 s{sT}, s{sT}, {A_QI}\nv_add_u32 v{vQim}, s{sT}, v{vQim}")
        self.bop_addr(vQb, vT0, 0)
        a(f"v_add_u32 v{vPb}, {A_PI}, v{vQb}\nv_add_u32 v{vQb}, s{sT}, v{vQb}")
        a(f"s_lshl_b32 s{sT}, s{sW}, 9\nv_add_u32 v{vPw}, s{sT}, v{vPb}")
        a(f"v_and_b32 v{vMx}, 3, v{L}\nv_lshlrev_b32 v{vMx}, 4, v{vMx}\nv_add_u32 v{vMx}, {A_MX}, v{vMx}")
        a(f"v_lshrrev_b32 v{vT0}, 2, v{L}\nv_and_b32 v{vT1}, 7, v{vT0}\ns_lshl_b32 s{sT}, s{sW}, 1\nv_xor_b32 v{vT1}, s{sT}, v{vT1}")
        a(f"v_lshlrev_b32 v{vT1}, 5, v{vT1}\nv_lshl_add_u32 v{vT1}, v{vT0}, 8, v{vT1}\nv_and_b32 v{vT0}, 3, v{L}\nv_lshl_add_u32 v{vT1}, v{vT0}, 3, v{vT1}")
        a(f"v_add_u32 v{vVt}, {L_T1}, v{vT1}\nv_xor_b32 v{vVt+1}, 32, v{vVt}")
        a("s_waitcnt vmcnt(24)")
        for t in range(4):
            for cc in range(4):
                a(f"ds_read_b128 {vr(vK+16*t+4*cc)}, v{vKr+cc} offset:{4096*t}")
            if t % 2 == 1: a("s_waitcnt lgkmcnt(0)")
        self.stamp(2)
        self.get_nonce()
        qok = self.lab("qok")
        for pc in range(4):
            nxt = self.lab("qn")
            a(f"s_waitcnt vmcnt({22-6*pc})")
            self.check(vQP+8*pc, vT0, vT1, True); self.check(vQP+8*pc+4, vT0, vT1, False)
            a(f"s_cmp_eq_u64 s[{sBAD}:{sBAD+1}], 0\ns_cbranch_scc0 {nxt}")
            for i in range(4): a(f"v_cvt_pk_bf16_f32 v{vP+i}, v{vQP+8*pc+2*i}, v{vQP+8*pc+2*i+1}")
            a(f"s_branch {qok}")
            a.label(nxt)
        self.poll([f"buffer_load_dwordx4 {vr(vQP)}, v{vQrow}, {sr(SRD_WS)}, s{sQ} offen sc1",
                   f"buffer_load_dwordx4 {vr(vQP+4)}, v{vQrow}, {sr(SRD_WS)}, s{sQ} offen offset:1024 sc1"],
                  [vQP, vQP+4], vT0, vT1)
        for i in range(4): a(f"v_cvt_pk_bf16_f32 v{vP+i}, v{vQP+2*i}, v{vQP+2*i+1}")
        a.label(qok)
        self.stamp(3)
        a(f"ds_write_b64 v{vQim}, {vr(vP,2)}\nds_write_b64 v{vQim}, {vr(vP+2,2)} offset:128")
        a("s_waitcnt lgkmcnt(0)")
        for cc in range(4): a(f"ds_read_b128 {vr(vQ+4*cc)}, v{vQb} offset:{256*cc}")
        for cc in range(4):
            a(f"s_waitcnt lgkmcnt({3-cc})")
            for t in range(4):
                a(f"v_mfma_f32_16x16x32_bf16 {vr(vS+4*t)}, {vr(vK+16*t+4*cc)}, {vr(vQ+4*cc)}, {'0' if cc == 0 else vr(vS+4*t)}")
        a(f"v_max3_f32 v{vM}, v{vS}, v{vS+1}, v{vS+2}")
        for i in range(3, 15, 2): a(f"v_max3_f32 v{vM}, v{vM}, v{vS+i}, v{vS+i+1}")
        a(f"v_max_f32 v{vM}, v{vM}, v{vS+15}")
        self.rowreduce([vM], [vT0], "max")
        a(f"s_lshl_b32 s{sT}, s{sW}, 2\nv_add_u32 v{vT0}, s{sT}, v{vMx}\nds_write_b32 v{vT0}, v{vM}")
        a("s_waitcnt lgkmcnt(0)\ns_barrier")
        a(f"ds_read_b128 {vr(vP)}, v{vMx}\ns_waitcnt lgkmcnt(0)")
        a(f"v_max3_f32 v{vM}, v{vP}, v{vP+1}, v{vP+2}\nv_max_f32 v{vM}, v{vM}, v{vP+3}")
        sC = sU + 6
        a(f"s_mov_b32 s{sC}, 0x3e0293ee")
        a(f"v_mul_f32 v{vM}, s{sC}, v{vM}")
        for i in range(16): a(f"v_fma_f32 v{vS+i}, v{vS+i}, s{sC}, -v{vM}")
        for i in range(16): a(f"v_exp_f32 v{vS+i}, v{vS+i}")
        for i in range(8): a(f"v_cvt_pk_bf16_f32 v{vP+i}, v{vS+2*i}, v{vS+2*i+1}")
        for t in range(4):
            a(f"ds_write_b64 v{vPw}, {vr(vP+2*t,2)} offset:{(t>>1)*256+(t&1)*8}")
        a(f"v_add_f32 v{vLs}, v{vS}, v{vS+1}")
        for i in range(2, 16): a(f"v_add_f32 v{vLs}, v{vLs}, v{vS+i}")
        self.rowreduce([vLs], [vT0], "add")
        a(f"s_lshl_b32 s{sT}, s{sW}, 2\nv_add_u32 v{vT0}, s{sT}, v{vMx}\nds_write_b32 v{vT0}, v{vLs} offset:{A_LS-A_MX}")
        a("s_waitcnt lgkmcnt(0)\ns_barrier")
        for m in range(8): a(f"ds_read_b128 {vr(vPB+4*m)}, v{vPb} offset:{256*m}")
        a(f"ds_read_b128 {vr(vP)}, v{vMx} offset:{A_LS-A_MX}")
        a("s_waitcnt lgkmcnt(0)")
        a(f"v_add_f32 v{vLs}, v{vP}, v{vP+1}\nv_add_f32 v{vT0}, v{vP+2}, v{vP+3}\nv_add_f32 v{vLs}, v{vLs}, v{vT0}")
        self.stamp(4)
        for pc in range(4):
            a(f"s_waitcnt vmcnt({max(0, 18-6*pc)})\ns_barrier")
            for k in range(2):
                for d in range(2):
                    m = 2*pc + k
                    self.tr_pair(vVf+8*k+4*d, vVt+d, 8192*m, 8192*m + 4096)
            for k in range(2):
                for d in range(2):
                    m = 2*pc + k
                    a(f"s_waitcnt lgkmcnt({2*(3-(2*k+d))})")
                    a(f"v_mfma_f32_16x16x32_bf16 {vr(vAcc+4*d)}, {vr(vVf+8*k+4*d)}, {vr(vPB+4*m)}, {'0' if m == 0 else vr(vAcc+4*d)}")
        self.stamp(5)
        self.pub_voff(vPub, vT0, 512)
        a(f"s_lshl_b32 s{so}, s{sB}, 3\ns_add_u32 s{so}, s{so}, s{sXCD}\ns_lshl_b32 s{sKV}, s{so}, 8\ns_lshl_b32 s{so}, s{so}, 2\ns_add_u32 s{so}, s{so}, s{sS_}\ns_lshl_b32 s{so}, s{so}, 11")
        a(f"s_lshl_b32 s{sT}, s{sW}, 7\ns_add_u32 s{so}, s{so}, s{sT}\ns_add_u32 s{so}, s{so}, {OO}")
        self.tag(vP, vAcc); self.tag(vP+4, vAcc+4)
        a(f"v_mov_b32 v{vS}, v{vM}\nv_mov_b32 v{vS+1}, v{vLs}\nv_mov_b32 v{vS+2}, 0\nv_mov_b32 v{vS+3}, 0")
        self.tag(vS+4, vS)
        a(f"v_and_b32 v{vT0}, 15, v{L}\nv_lshlrev_b32 v{vT0}, 6, v{vT0}")
        a(f"s_lshl_b32 s{sT}, s{sS_}, 4\ns_add_u32 s{sKV}, s{sKV}, s{sT}\ns_add_u32 s{sKV}, s{sKV}, {ST}")
        self.pubmask(True)
        a(f"buffer_store_dwordx4 {vr(vP)}, v{vPub}, {sr(SRD_WS)}, s{so} offen sc1")
        a(f"buffer_store_dwordx4 {vr(vP+4)}, v{vPub}, {sr(SRD_WS)}, s{so} offen offset:64 sc1")
        nost = self.lab("nost")
        a(f"s_cmp_lg_u32 s{sW}, 0\ns_cbranch_scc1 {nost}")
        a(f"s_mov_b64 exec, 15")
        a(f"buffer_store_dwordx4 {vr(vS+4)}, v{vT0}, {sr(SRD_WS)}, s{sKV} offen sc1")
        a.label(nost)
        self.pubmask(False)
        self.stamp(6)
        a(f"s_cmp_lg_u32 s{sS_}, 0\ns_cbranch_scc1 L_exit")
        sTT = sU + 7
        a(f"s_lshl_b32 s{sTT}, s{sB}, 3\ns_add_u32 s{sTT}, s{sTT}, s{sXCD}")
        vX, vGA, vGB, vX1 = vK, vK+4, vK+8, vK+12
        vD = vK + 16
        vGo, vLin, vRw, vRr = vQrow, vQim, vQb, vPw
        self.srd(SRD_A, P_X, 4096); self.srd(SRD_B, P_OUT, 4096)
        a(f"v_bfe_u32 v{vT0}, v{L}, 2, 2\nv_and_b32 v{vT1}, 3, v{L}")
        a(f"v_lshlrev_b32 v{vT2}, 10, v{vT0}\nv_lshl_add_u32 v{vT2}, v{vT1}, 3, v{vT2}\ns_lshl_b32 s{sT}, s{sTT}, 5\nv_add_u32 v{vT2}, s{sT}, v{vT2}")
        a(f"v_lshlrev_b32 v{vGo}, 11, v{vT0}\nv_lshl_add_u32 v{vGo}, v{vT1}, 4, v{vGo}\ns_lshl_b32 s{sT}, s{sTT}, 6\nv_add_u32 v{vGo}, s{sT}, v{vGo}")
        a(f"buffer_load_dwordx2 {vr(vD,2)}, v{vT2}, {sr(SRD_A)}, 0 offen")
        a(f"v_lshlrev_b32 v{vLin}, 4, v{L}")
        a(f"s_lshl_b32 s{sT}, s{sW}, 8\nv_and_b32 v{vT0}, 15, v{L}\nv_lshlrev_b32 v{vT0}, 4, v{vT0}\nv_add_u32 v{vRr}, {A_RB}, v{vT0}")
        a(f"v_lshrrev_b32 v{vT1}, 4, v{L}\nv_lshl_add_u32 v{vRw}, v{vT1}, 2, v{vRr}\nv_add_u32 v{vRw}, s{sT}, v{vRw}")
        s0, s1 = sU + 8, sU + 9
        a(f"s_mov_b32 s{s0}, {MOD+2*8192}")
        a("s_waitcnt vmcnt(0)")
        self.unpack_bf16x4(vX, vD)
        self.poll([f"buffer_load_dwordx4 {vr(vGA)}, v{vGo}, {sr(SRD_WS)}, s{s0} offen sc1"], [vGA], vT0, vT1)
        def reduce_sets(n):
            for k in range(1, n):
                for i in range(4): a(f"v_add_f32 v{vD+i}, v{vD+i}, v{vD+4*k+i}")
            a(f"v_permlane16_swap_b32 v{vD}, v{vD+1}\nv_permlane16_swap_b32 v{vD+2}, v{vD+3}")
            a(f"v_add_f32 v{vD}, v{vD}, v{vD+1}\nv_add_f32 v{vD+2}, v{vD+2}, v{vD+3}")
            a(f"v_permlane32_swap_b32 v{vD}, v{vD+2}")
            a(f"v_add_f32 v{vD}, v{vD}, v{vD+2}")
            a(f"ds_write_b32 v{vRw}, v{vD}")
            a("s_waitcnt lgkmcnt(0)\ns_barrier")
            for w in range(4): a(f"ds_read_b128 {vr(vD+4*w)}, v{vRr} offset:{256*w}")
            a("s_waitcnt lgkmcnt(0)")
            for i in range(4): a(f"v_add_f32 v{vD+i}, v{vD+i}, v{vD+4+i}\nv_add_f32 v{vD+8+i}, v{vD+8+i}, v{vD+12+i}")
            for i in range(4): a(f"v_add_f32 v{vD+i}, v{vD+i}, v{vD+8+i}")
        a(f"s_lshl_b32 s{s0}, s{sTT}, 13\ns_lshl_b32 s{sT}, s{sW}, 11\ns_add_u32 s{s0}, s{s0}, s{sT}\ns_add_u32 s{s0}, s{s0}, {YY}")
        self.poll([f"buffer_load_dwordx4 {vr(vD)}, v{vLin}, {sr(SRD_WS)}, s{s0} offen sc1",
                   f"buffer_load_dwordx4 {vr(vD+4)}, v{vLin}, {sr(SRD_WS)}, s{s0} offen offset:1024 sc1"],
                  [vD, vD+4], vT0, vT1)
        self.stamp(7)
        reduce_sets(2)
        for i in range(4): a(f"v_fma_f32 v{vX1+i}, v{vGA+i}, v{vD+i}, v{vX+i}")
        self.tag(vD, vX1)
        a(f"s_mov_b32 s{s0}, {X1}")
        nox = self.lab("nox")
        a(f"s_cmp_lg_u32 s{sW}, 0\ns_cbranch_scc1 {nox}\ns_mov_b64 exec, 0xffff")
        a(f"buffer_store_dwordx4 {vr(vD)}, v{vGo}, {sr(SRD_WS)}, s{s0} offen sc1")
        a("s_mov_b64 exec, -1")
        a.label(nox)
        self.stamp(8)
        a(f"s_mov_b32 s{s0}, {MOD+5*8192}")
        self.poll([f"buffer_load_dwordx4 {vr(vGB)}, v{vGo}, {sr(SRD_WS)}, s{s0} offen sc1"], [vGB], vT0, vT1)
        a(f"s_mul_i32 s{s0}, s{sTT}, {NM*256}\ns_lshl_b32 s{sT}, s{sW}, 10\ns_add_u32 s{s0}, s{s0}, s{sT}\ns_add_u32 s{s0}, s{s0}, {OP}")
        a(f"s_add_u32 s{s1}, s{s0}, 8192")
        three = self.lab("three"); got = self.lab("got")
        base = [f"buffer_load_dwordx4 {vr(vD)}, v{vLin}, {sr(SRD_WS)}, s{s0} offen sc1"]
        sx = sU + 10
        a(f"s_add_u32 s{sx}, s{s0}, 4096\ns_add_u32 s{sx+1}, s{s0}, 12288")
        l3 = [f"buffer_load_dwordx4 {vr(vD)}, v{vLin}, {sr(SRD_WS)}, s{s0} offen sc1",
              f"buffer_load_dwordx4 {vr(vD+4)}, v{vLin}, {sr(SRD_WS)}, s{sx} offen sc1",
              f"buffer_load_dwordx4 {vr(vD+8)}, v{vLin}, {sr(SRD_WS)}, s{s1} offen sc1"]
        a(f"s_cmp_ge_u32 s{sW}, 2\ns_cbranch_scc1 {three}")
        self.poll(l3 + [f"buffer_load_dwordx4 {vr(vD+12)}, v{vLin}, {sr(SRD_WS)}, s{sx+1} offen sc1"], [vD, vD+4, vD+8, vD+12], vT0, vT1)
        for i in range(4): a(f"v_add_f32 v{vD+8+i}, v{vD+8+i}, v{vD+12+i}")
        a(f"s_branch {got}")
        a.label(three)
        self.poll(l3, [vD, vD+4, vD+8], vT0, vT1)
        a.label(got)
        self.stamp(9)
        a("s_barrier")
        reduce_sets(3)
        for i in range(4): a(f"v_fma_f32 v{vX1+i}, v{vGB+i}, v{vD+i}, v{vX1+i}")
        a(f"v_cvt_pk_bf16_f32 v{vD}, v{vX1}, v{vX1+1}\nv_cvt_pk_bf16_f32 v{vD+1}, v{vX1+2}, v{vX1+3}")
        a(f"s_cmp_lg_u32 s{sW}, 0\ns_cbranch_scc1 L_exit\ns_mov_b64 exec, 0xffff")
        a(f"buffer_store_dwordx2 {vr(vD,2)}, v{vT2}, {sr(SRD_B)}, 0 offen")
        a("s_mov_b64 exec, -1")
        self.stamp(10)
        a("s_branch L_exit")

    def epilogue(self):
        a = self.a
        a.label("L_exit")
        if self.o.get("dbgprof"):
            a("s_mov_b64 exec, -1")
            a(f"s_memrealtime s[{sSTAMPT}:{sSTAMPT+1}]\ns_waitcnt lgkmcnt(0)\ns_mov_b32 s{sSTAMP+15}, s{sSTAMPT}")
            self.srd(SRD_D, P_DBG, 256)
            a(f"s_not_b32 s{sSTAMP}, s{sSTAMP}")
            a("v_mov_b32 v8, 0")
            for i in range(16): a(f"v_writelane_b32 v8, s{sSTAMP+i}, {i}")
            a(f"s_mov_b32 s{sT}, 0\ns_cmp_ge_u32 s{sSLOT}, 16\ns_cselect_b32 s{sT}, 1, s{sT}\ns_cmp_ge_u32 s{sSLOT}, 24\ns_cselect_b32 s{sT}, 2, s{sT}")
            W = self.o["dbgmap"]
            a("v_mov_b32 v9, 0")
            for r in range(3):
                lab = self.lab("dm")
                a(f"s_cmp_lg_u32 s{sT}, {r}\ns_cbranch_scc1 {lab}")
                for i in range(16): a(f"s_mov_b32 s{sU+1}, {4*W[r].get(i, 100)}\nv_writelane_b32 v9, s{sU+1}, {i}")
                a.label(lab)
            a("s_mov_b64 exec, 0xffff")
            a(f"buffer_atomic_umax v8, v9, {sr(SRD_D)}, 0 offen sc1\ns_waitcnt vmcnt(0)")
        elif self.prof:
            a("s_mov_b64 exec, -1")
            a(f"s_memrealtime s[{sSTAMPT}:{sSTAMPT+1}]\ns_waitcnt lgkmcnt(0)\ns_mov_b32 s{sSTAMP+15}, s{sSTAMPT}")
            a("v_mov_b32 v8, 0")
            for i in range(16): a(f"v_writelane_b32 v8, s{sSTAMP+i}, {i}")
            a(f"s_lshl_b32 s{sT}, s2, 2\ns_add_u32 s{sT}, s{sT}, s{sW}\ns_lshl_b32 s{sT}, s{sT}, 6\ns_add_u32 s{sT}, s{sT}, {PROF}")
            a(f"v_lshlrev_b32 v9, 2, v{self.vL}\ns_mov_b64 exec, 0xffff")
            a(f"buffer_store_dword v8, v9, {sr(SRD_WS)}, s{sT} offen\ns_waitcnt vmcnt(0)")
        a.label("L_end")
        a("s_endpgm")

    def build(self):
        self.prologue(); self.roleG(); self.roleQ(); self.roleA(); self.epilogue()
        body = fix_hazards(self.a.lines)
        nv = (self.maxv + 7) // 8 * 8
        hdr = open("adaLN_cond__sliding_block_cached__glu_gated_glu__decode.s.ref").read().split("; Override")[0]
        out = hdr + f"; @launch grid=(256,1,1) block=(256,1,1) lds={LDS_BYTES}\n"
        out += f'.amdgcn_target "amdgcn-amd-amdhsa--gfx950"\n.text\n.globl {NAME}\n.p2align 8\n.type {NAME},@function\n{NAME}:\n'
        out += "\n".join(("" if l.endswith(":") else "  ") + l for l in body) + "\n"
        out += f""".section .rodata,"a"
.p2align 6
.amdhsa_kernel {NAME}
  .amdhsa_next_free_vgpr {nv}
  .amdhsa_next_free_sgpr 102
  .amdhsa_accum_offset {nv}
  .amdhsa_group_segment_fixed_size 0
  .amdhsa_kernarg_size 112
  .amdhsa_user_sgpr_count 2
  .amdhsa_user_sgpr_kernarg_segment_ptr 1
  .amdhsa_system_sgpr_workgroup_id_x 1
  .amdhsa_float_denorm_mode_32 3
.end_amdhsa_kernel
"""
        return out

if __name__ == "__main__":
    prof = "--prof" in sys.argv or "--dbgprof" in sys.argv
    opts = {}
    if "--dbgprof" in sys.argv:
        opts["dbgprof"] = True
        opts["dbgmap"] = [{0:1, 2:5, 3:6, 6:7, 7:10, 8:11, 9:14, 15:15}, {0:1, 3:3, 4:4, 6:8, 7:9, 15:15}, {0:1, 3:2, 6:12, 7:13, 15:15}]
    for x in sys.argv[1:]:
        if x.startswith("--o:"):
            k, v = x[4:].split("="); opts[k] = int(v)
    outp = [x for x in sys.argv[1:] if not x.startswith("--")]
    s = Gen(prof=prof, opts=opts).build()
    if outp: open(outp[0], "w").write(s)
    else: print(s)
```
